```python
import torch

def _softmax(x, axis=-1):
    return torch.softmax(x, dim=axis)
def _gelu(x):
    return torch.nn.functional.gelu(x, approximate="tanh")
def _silu(x):
    return torch.nn.functional.silu(x)
def _sigmoid(x):
    return torch.sigmoid(x)
def _layernorm(x, axis=-1, eps=1e-5):
    m = x.mean(dim=axis, keepdim=True)
    v = x.var(dim=axis, keepdim=True, unbiased=False)
    return (x - m) / torch.sqrt(v + eps)
def _scatter_add(tgt, idx, src, axis=0):
    return tgt.clone().index_add_(axis, idx, src)
def _segment_sum(src, seg, n):
    out = torch.zeros((n,) + src.shape[1:], dtype=src.dtype)
    return out.index_add_(0, seg, src)
def _pad(x, pw):
    flat = tuple(v for pair in reversed(pw) for v in pair)
    return torch.nn.functional.pad(x, flat)

kernel_name = 'standalone__gqa_softmax__near_ridge'

def setup_inputs():

    _w = (lambda a: (lambda t: t.to(torch.bfloat16) if t.is_floating_point() else t)(torch.as_tensor(a)))
    B, Hq, Hkv, Sq, Sk, D = 8, 32, 32, 496, 512, 128
    return {
        "q": _w((lambda *s: torch.randn(*s, dtype=torch.bfloat16) * 0.8)(B, Hq, Sq, D)),
        "k": _w((lambda *s: torch.randn(*s, dtype=torch.bfloat16) * 0.8)(B, Hkv, Sk, D)),
        "v": _w((lambda *s: torch.randn(*s, dtype=torch.bfloat16) * 0.05)(B, Hkv, Sk, D)),
    }

def reference(q, k, v):
    B, Hq, Sq, D = q.shape
    Hkv = k.shape[1]
    rep = Hq // Hkv
    k = (lambda x, n, axis: torch.repeat_interleave(x, n, dim=axis))(k, rep, axis=1)
    v = (lambda x, n, axis: torch.repeat_interleave(x, n, dim=axis))(v, rep, axis=1)
    scale = D ** -0.5
    scores = torch.einsum("bhqd,bhkd->bhqk", q, k) * scale
    p = _softmax(scores, axis=-1)
    return torch.einsum("bhqk,bhkd->bhqd", p, v)
```

```python
import sys, math, struct, argparse

NAME = "standalone__gqa_softmax__near_ridge_kernel"

def f2u(x): return struct.unpack("<I", struct.pack("<f", x))[0]

class Opt:
    nt_kv = " nt"
    nt_q = " nt"
    nt_o = " nt"
    stamps = False
    pv_order = "qt"
    fill_dummy = True
    code_prefetch = True
    name = NAME
    nomem = False

V_AK = 4
V_AV = 8
V_KD = 16
V_VD = 18
V_Q = 20
V_O = 24
V_L = 28
V_T = 32
V_S = 64
V_OACC = 128
A_Q = 0; A_K = 64; A_V = 96; A_QR = 128

S_K = 8; S_V = 12; S_Q = 16; S_O = 20
S_KOFF = 24; S_VOFF = 25; S_M0K = 26; S_M0V = 27
S_PASS = 28; S_UNIT = 29; S_QNR = 30; S_W = 31
S_C = 34
S_Q1B = 36
S_O1B = 40
S_BAD = 44
S_T = 46
S_STAMP = 64

def Sreg(buf, qt, kt): return V_S + buf*32 + qt*8 + kt*4
def vr(a, n=4): return f"v[{a}:{a+n-1}]"
def ar(a, n=4): return f"a[{a}:{a+n-1}]"
def sr(a, n=4): return f"s[{a}:{a+n-1}]"

class Block:
    def __init__(self, name):
        self.name = name; self.items = []
        self.ds_q = []
    def i(self, text): self.items.append(('i', text))
    def label(self, l): self.items.append(('i', l + ":"))
    def vm(self, text, tagfn): self.items.append(('vm', text, tagfn))
    def vw(self, needfn, extra=""):
        self.items.append(('vw', (self.name, len(self.items)), needfn, extra))
    def ds(self, text, tag):
        self.i(text); self.ds_q.append(tag)
    def ds_need(self, tags):
        idx = -1
        for t in tags:
            if t in self.ds_q: idx = max(idx, self.ds_q.index(t))
        if idx < 0: return
        after = len(self.ds_q) - 1 - idx
        n = min(after, 15)
        self.i(f"s_waitcnt lgkmcnt({n})")
        self.ds_q = self.ds_q[len(self.ds_q) - n:] if n > 0 else []

def mfma(d, a, b, c): return f"v_mfma_f32_16x16x32_bf16 {d}, {a}, {b}, {c}"

def k_read(blk, slot, kt, s):
    blk.ds(f"ds_read_b128 {ar(A_K + kt*16 + s*4)}, v{V_AK+s} offset:{slot*8192 + kt*4096}", ('K', kt, s))
def v_read(blk, slot, T, hh):
    blk.ds(f"ds_read_b64_tr_b16 {ar(A_V + T*4 + hh*2, 2)}, v{V_AV+T} offset:{slot*8192 + hh*4096}", ('V', T, hh))

def qk_mfmas(buf):
    out = []
    for qt in range(4):
        for kt in range(2):
            for s in range(4):
                d = vr(Sreg(buf, qt, kt))
                out.append((mfma(d, ar(A_K + kt*16 + s*4), ar(A_Q + qt*16 + s*4), "0" if s == 0 else d), [('K', kt, s)]))
    return out
def pv_mfmas(buf, zero, order):
    out = []
    seq = [(qt, T) for qt in range(4) for T in range(8)] if order == "qt" else [(qt, T) for T in range(8) for qt in range(4)]
    for qt, T in seq:
        d = vr(V_OACC + qt*32 + T*4)
        out.append((mfma(d, ar(A_V + T*4), vr(Sreg(buf, qt, 0)), "0" if zero else d), [('V', T, 0), ('V', T, 1)], qt))
    return out

def sm_items(buf, qt):
    base = Sreg(buf, qt, 0)
    gaps = [[] for _ in range(16)]
    for e in range(8):
        gaps[2*e].append(f"v_exp_f32 v{base+e}, v{base+e}")
        gaps[2*e+1].append(f"v_add_f32 v{V_L+qt}, v{V_L+qt}, v{base+e}")
    for k in range(4):
        gaps[4*k+3].append(f"v_cvt_pk_bf16_f32 v{base+k}, v{base+2*k}, v{base+2*k+1}")
    return gaps

def sm_flat(buf, qt):
    base = Sreg(buf, qt, 0)
    e = lambda i: f"v_exp_f32 v{base+i}, v{base+i}"
    a = lambda i: f"v_add_f32 v{V_L+qt}, v{V_L+qt}, v{base+i}"
    c = lambda k: f"v_cvt_pk_bf16_f32 v{base+k}, v{base+2*k}, v{base+2*k+1}"
    return [e(0), e(1), a(0), e(2), a(1), e(3), c(0), a(2), e(4), a(3), e(5), c(1), a(4), e(6), a(5), e(7), c(2), a(6), a(7), c(3)]

def dma_ops(o, p, kind):
    ops = []
    ks = p % 8; vs = (p + 7) % 8
    ops.append(([f"s_add_u32 m0, s{S_M0K}, {ks*8192}"], f"buffer_load_dwordx4 v{V_KD}, {sr(S_K)}, s{S_KOFF} offen{o.nt_kv} lds", lambda c: ('K', c['j']+8, 0)))
    ops.append(([], f"buffer_load_dwordx4 v{V_KD+1}, {sr(S_K)}, s{S_KOFF} offen offset:1024{o.nt_kv} lds", lambda c: ('K', c['j']+8, 1)))
    ops.append(([f"s_add_u32 m0, s{S_M0V}, {vs*8192}"], f"buffer_load_dwordx4 v{V_VD}, {sr(S_V)}, s{S_VOFF} offen{o.nt_kv} lds", lambda c: ('V', c['j']+7, 0)))
    ops.append(([], f"buffer_load_dwordx4 v{V_VD+1}, {sr(S_V)}, s{S_VOFF} offen offset:1024{o.nt_kv} lds", lambda c: ('V', c['j']+7, 1)))
    if kind == 'full' and p < 4:
        for s in range(4):
            ops.append(([], f"buffer_load_dwordx4 {ar(A_QR + p*16 + s*4)}, v{V_Q+p}, {sr(S_Q)}, 0 offen offset:{s*64}{o.nt_q}",
                        (lambda s_: (lambda c: ('Q', 1 if c['j'] == 8 + p else -1, p, s_, c['j'])))(s)))
    return ops

def need_bj(c):
    j = c['j']
    return [('K', j+2, 0), ('K', j+2, 1), ('V', j, 0), ('V', j, 1)]

def emit_iter(o, p, kind):
    name = {'full': f"P{p}", 'zero': "PZ", 'drain': "PD"}[kind]
    b = Block(name)
    cb = p % 2; nb = 1 - cb
    if kind != 'drain':
        b.ds_q = [('K', kt, s) for kt in range(2) for s in range(4)]
    pv = pv_mfmas(cb, kind == 'zero', o.pv_order)
    dmas = dma_ops(o, p, kind)
    if kind == 'drain':
        if not o.nomem:
            b.vw(need_bj, "bar")
        for T in range(8):
            for hh in range(2): v_read(b, p, T, hh)
        sm3 = sm_flat(cb, 3)
        pre = sm3[:6]; sm3 = sm3[6:]
        for x in pre: b.i(x)
        di = 0
        for n, (txt, deps, qt) in enumerate(pv):
            b.ds_need(deps)
            if o.pv_order != "qt" and n == 0:
                for x in sm3: b.i(x)
                sm3 = []
                b.i("s_nop 1")
            b.i(txt)
            if di < len(dmas) and n % 2 == 1 and not o.nomem:
                pre_s, t, tag = dmas[di]; di += 1
                for x in pre_s: b.i(x); b.i("s_nop 0")
                b.vm(t, tag)
            k = 0
            while sm3 and k < 2:
                x = sm3.pop(0); b.i(x); k += 2 if 'exp' in x else 1
            if n == 20 and o.pv_order == "qt": assert not sm3
        if not o.nomem:
            b.i(f"s_add_u32 s{S_KOFF}, s{S_KOFF}, 8192"); b.i(f"s_add_u32 s{S_VOFF}, s{S_VOFF}, 8192")
        return b
    qk = qk_mfmas(nb)
    mf = [(t, d) for (t, d) in qk] + [(t, d) for (t, d, _) in pv]
    gaps = [[] for _ in range(64)]
    for w0, (buf, qt) in ((0, (cb, 3)), (16, (nb, 0)), (32, (nb, 1)), (48, (nb, 2))):
        for g, lst in enumerate(sm_items(buf, qt)): gaps[w0+g] += lst
    vreads = [(T, hh) for T in range(8) for hh in range(2)]
    kreads = [(kt, s) for kt in range(2) for s in range(4)]
    kslot = (p + 2) % 8
    di = 0
    b.ds_need(mf[0][1])
    for g in range(64):
        b.i(mf[g][0])
        if g == 0 and not o.nomem:
            b.vw(need_bj, "bar")
        if g + 1 < 64: b.ds_need(mf[g+1][1])
        if g == 2 and kind == 'full' and p == 4:
            b.i(f"s_mov_b32 s{S_Q+2}, 0")
        if g == 2 and kind == 'full' and p == 7:
            b.i(f"s_mov_b32 s{S_Q+2}, s{S_QNR}")
        if g % 2 == 1:
            if g < 32:
                T, hh = vreads[g//2]; v_read(b, p, T, hh)
            elif g < 48:
                kt, s = kreads[(g-33)//2]; k_read(b, kslot, kt, s)
            elif di < len(dmas) and not o.nomem:
                pre_s, t, tag = dmas[di]; di += 1
                b.vm(t, tag)
        elif g >= 48 and di < len(dmas) and not o.nomem:
            for x in dmas[di][0]: b.i(x)
        for x in gaps[g]: b.i(x)
    assert o.nomem or di == len(dmas), (di, len(dmas))
    if not o.nomem:
        b.i(f"s_add_u32 s{S_KOFF}, s{S_KOFF}, 8192"); b.i(f"s_add_u32 s{S_VOFF}, s{S_VOFF}, 8192")
    exp_out = [('K', kt, s) for kt in range(2) for s in range(4)]
    assert b.ds_q == exp_out[-len(b.ds_q):] or b.ds_q == exp_out, b.ds_q
    return b

def emit_prescale_fill(o):
    b = Block("US")
    b.label("L_USTART")
    b.ds_q = [('K', kt, s) for kt in range(2) for s in range(4)]
    for qt in range(4): b.i(f"v_mov_b32 v{V_L+qt}, 0")
    for qt in range(4):
        b.vw((lambda qt_: (lambda c: [('Q', c['unit'], qt_, s) for s in range(4)]))(qt))
        for g in range(4):
            r0 = qt*16 + g*4
            t = V_T
            for x in range(4): b.i(f"v_accvgpr_read_b32 v{t+x}, a{A_QR+r0+x}")
            for x in range(4):
                b.i(f"v_lshlrev_b32 v{t+4+2*x}, 16, v{t+x}")
                b.i(f"v_and_b32 v{t+5+2*x}, 0xffff0000, v{t+x}")
            for x in range(4):
                b.i(f"v_pk_mul_f32 {vr(t+4+2*x,2)}, {vr(t+4+2*x,2)}, {sr(S_C,2)}")
            for x in range(4):
                b.i(f"v_cvt_pk_bf16_f32 v{t+x}, v{t+4+2*x}, v{t+5+2*x}")
            for x in range(4):
                b.i(f"v_accvgpr_write_b32 a{A_Q+r0+x}, v{t+x}")
    qk = qk_mfmas(0)
    sm = []
    for qt in range(3): sm.append(sm_flat(0, qt))
    b.ds_need(qk[0][1])
    b.i("s_nop 0")
    avail = []
    for n, (txt, deps) in enumerate(qk):
        b.ds_need(deps)
        b.i(txt)
        for qt in range(3):
            if n == 8*qt + 7 + 4: avail += sm[qt]
        k = 0
        while avail and k < 2:
            x = avail.pop(0); b.i(x); k += 2 if 'exp' in x else 1
    for kt in range(2):
        for s in range(4): k_read(b, 1, kt, s)
    for x in avail: b.i(x)
    return b

def emit_epilogue(o):
    b = Block("EP")
    t = V_T
    for qt in range(4): b.i(f"v_mov_b32 v{t+qt}, v{V_L+qt}")
    b.i("s_nop 0")
    for qt in range(4): b.i(f"v_permlane32_swap_b32 v{V_L+qt}, v{t+qt}")
    for qt in range(4): b.i(f"v_add_f32 v{V_L+qt}, v{V_L+qt}, v{t+qt}")
    for qt in range(4): b.i(f"v_mov_b32 v{t+qt}, v{V_L+qt}")
    b.i("s_nop 0")
    for qt in range(4): b.i(f"v_permlane16_swap_b32 v{V_L+qt}, v{t+qt}")
    for qt in range(4): b.i(f"v_add_f32 v{V_L+qt}, v{V_L+qt}, v{t+qt}")
    b.i(f"v_min3_f32 v{t+4}, v{V_L}, v{V_L+1}, v{V_L+2}")
    b.i(f"v_max3_f32 v{t+5}, v{V_L}, v{V_L+1}, v{V_L+2}")
    b.i(f"v_min_f32 v{t+4}, v{t+4}, v{V_L+3}")
    b.i(f"v_max_f32 v{t+5}, v{t+5}, v{V_L+3}")
    for qt in range(4): b.i(f"v_rcp_f32 v{t+8+2*qt}, v{V_L+qt}")
    for qt in range(4):
        for tp in range(4):
            x = V_OACC + qt*32 + tp*8
            for h in range(4):
                b.i(f"v_pk_mul_f32 {vr(x+2*h,2)}, {vr(x+2*h,2)}, {vr(t+8+2*qt,2)} op_sel_hi:[1,0]")
            b.i(f"v_cvt_pk_bf16_f32 v{x}, v{x}, v{x+1}")
            b.i(f"v_cvt_pk_bf16_f32 v{x+1}, v{x+2}, v{x+3}")
            b.i(f"v_cvt_pk_bf16_f32 v{x+2}, v{x+4}, v{x+5}")
            b.i(f"v_cvt_pk_bf16_f32 v{x+3}, v{x+6}, v{x+7}")
            if tp > 0 or qt > 0:
                pass
            b.i("s_nop 1")
            b.i(f"v_permlane16_swap_b32 v{x}, v{x+2}")
            b.i(f"v_permlane16_swap_b32 v{x+1}, v{x+3}")
            b.vm(f"buffer_store_dwordx4 {vr(x)}, v{V_O+qt}, {sr(S_O)}, 0 offen offset:{tp*64}{o.nt_o}",
                 (lambda qt_, tp_: (lambda c: ('O', c['unit'], qt_, tp_)))(qt, tp))
    return b

def gen(o):
    c_scale = math.log2(math.e) / math.sqrt(128.0)
    A = []
    def i(t): A.append("    " + t)
    hdr = f"""; GQA softmax attention forward, hand-scheduled 16x16x32 bf16 MFMA kernel (generated by gen/gen_attn.py)
; @launch grid=(256,1,1) block=(256,1,1) lds=163840
.amdgcn_target "amdgcn-amd-amdhsa--gfx950"
.text
.globl {o.name}
.p2align 8
.type {o.name},@function
{o.name}:"""
    A.append(hdr)
    E = Block("EN")
    E.i("s_cmp_ge_u32 s2, 256")
    E.i("s_cbranch_scc1 L_END")
    E.i("s_load_dwordx4 s[4:7], s[0:1], 0")
    E.i("s_load_dwordx4 s[48:51], s[0:1], 16")
    if o.stamps:
        E.i("s_load_dwordx2 s[66:67], s[0:1], 40")
        E.i(f"s_memrealtime s[{S_STAMP+4}:{S_STAMP+5}]")
    if o.code_prefetch:
        E.i("s_getpc_b64 s[52:53]")
        E.label("L_PC0")
        E.i("v_lshlrev_b32 v1, 6, v0")
        E.i("global_load_dword v62, v1, s[52:53]")
        E.i("PREF2")
    E.i("v_lshrrev_b32 v1, 6, v0")
    E.i("v_and_b32 v2, 15, v0")
    E.i("v_readfirstlane_b32 s31, v1")
    E.i("v_bfe_u32 v3, v0, 4, 2")
    for s in range(4):
        E.i(f"v_or_b32 v32, {4*s}, v3")
        E.i("v_xor_b32 v32, v32, v2")
        E.i("v_lshlrev_b32 v32, 4, v32")
        E.i(f"v_lshl_add_u32 v{V_AK+s}, v2, 8, v32")
    E.i("v_lshrrev_b32 v33, 2, v2")
    E.i("v_lshl_add_u32 v34, v3, 2, v33")
    E.i("v_and_b32 v35, 7, v34")
    E.i("v_and_b32 v36, 3, v2")
    E.i("v_lshlrev_b32 v36, 3, v36")
    E.i("v_lshl_add_u32 v36, v34, 8, v36")
    E.i("v_add_u32 v36, 0x10000, v36")
    for T in range(8):
        E.i(f"v_xor_b32 v32, {T}, v35")
        E.i(f"v_lshl_add_u32 v{V_AV+T}, v32, 5, v36")
    E.i("v_lshlrev_b32 v33, 3, v1")
    E.i("v_add_u32 v33, v33, v3")
    for n in range(2):
        E.i(f"v_add_u32 v34, {4*n}, v33")
        E.i("v_and_b32 v35, 15, v34")
        E.i("v_xor_b32 v35, v35, v2")
        E.i("v_lshlrev_b32 v35, 4, v35")
        E.i("v_lshl_add_u32 v35, v34, 8, v35")
        E.i(f"v_subrev_u32 v{V_KD+n}, {1024*n}, v35")
        E.i("v_and_b32 v35, 7, v34")
        E.i("v_lshlrev_b32 v35, 1, v35")
        E.i("v_xor_b32 v35, v35, v2")
        E.i("v_lshlrev_b32 v35, 4, v35")
        E.i("v_lshl_add_u32 v35, v34, 8, v35")
        E.i(f"v_subrev_u32 v{V_VD+n}, {1024*n}, v35")
    E.i("v_lshl_add_u32 v33, v1, 6, v2")
    E.i("v_lshlrev_b32 v33, 8, v33")
    E.i("v_lshl_add_u32 v34, v3, 4, v33")
    E.i("v_and_b32 v35, 1, v3")
    E.i("v_lshl_add_u32 v35, v35, 5, v33")
    E.i("v_lshrrev_b32 v36, 1, v3")
    E.i("v_lshl_add_u32 v35, v36, 4, v35")
    for qt in range(4):
        E.i(f"v_add_u32 v{V_Q+qt}, {qt*4096}, v34")
        E.i(f"v_add_u32 v{V_O+qt}, {qt*4096}, v35")
    E.i("s_and_b32 s54, s2, 7")
    E.i("s_lshr_b32 s55, s2, 3")
    E.i("s_and_b32 s56, s55, 1")
    E.i("s_and_b32 s55, s55, 30")
    E.i("s_lshl_b32 s54, s54, 5")
    E.i("s_add_u32 s54, s54, s55")
    E.i(f"s_lshl_b32 s{S_KOFF}, s54, 17")
    E.i(f"s_mov_b32 s{S_VOFF}, s{S_KOFF}")
    E.i(f"s_add_u32 s57, s{S_KOFF}, 0x40000")
    E.i(f"s_lshl_b32 s{S_M0K}, s{S_W}, 11")
    E.i(f"s_add_u32 s{S_M0V}, s{S_M0K}, 0x10000")
    E.i("s_mul_i32 s58, s54, 126976")
    E.i("s_lshl_b32 s59, s56, 16")
    E.i("s_add_u32 s60, s58, s59")
    E.i("s_add_u32 s61, s58, 126976+65536")
    E.i("s_sub_u32 s61, s61, s59")
    E.i("s_mul_i32 s62, s56, 4096")
    E.i("s_sub_u32 s63, 65536, s62")
    E.i(f"s_add_u32 s{S_QNR}, s62, 61440")
    E.i(f"s_mov_b32 s{S_C}, {hex(f2u(c_scale))}")
    E.i(f"s_mov_b32 s{S_C+1}, {hex(f2u(c_scale))}")
    E.i(f"s_mov_b32 s{S_UNIT}, 0")
    E.i(f"s_mov_b32 s{S_BAD}, 0")
    E.i("s_waitcnt lgkmcnt(0)")
    E.i(f"s_mov_b32 s{S_K}, s6"); E.i(f"s_and_b32 s{S_K+1}, s7, 0xffff"); E.i(f"s_mov_b32 s{S_K+2}, s57"); E.i(f"s_mov_b32 s{S_K+3}, 0x20000")
    E.i(f"s_mov_b32 s{S_V}, s48"); E.i(f"s_and_b32 s{S_V+1}, s49, 0xffff"); E.i(f"s_mov_b32 s{S_V+2}, s57"); E.i(f"s_mov_b32 s{S_V+3}, 0x20000")
    E.i(f"s_add_u32 s{S_Q}, s4, s60"); E.i(f"s_addc_u32 s{S_Q+1}, s5, 0"); E.i(f"s_and_b32 s{S_Q+1}, s{S_Q+1}, 0xffff")
    E.i(f"s_mov_b32 s{S_Q+2}, s63"); E.i(f"s_mov_b32 s{S_Q+3}, 0x20000")
    def dma_k(t):
        E.i(f"s_add_u32 m0, s{S_M0K}, {(t%8)*8192}")
        E.i(f"s_add_u32 s46, s{S_KOFF}, {t*8192}")
        for n in range(2):
            E.vm(f"buffer_load_dwordx4 v{V_KD+n}, {sr(S_K)}, s46 offen" + (" offset:1024" if n else "") + f"{o.nt_kv} lds", (lambda t_, n_: (lambda c: ('K', t_, n_)))(t, n))
    def dma_v(t):
        E.i(f"s_add_u32 m0, s{S_M0V}, {(t%8)*8192}")
        E.i(f"s_add_u32 s46, s{S_VOFF}, {t*8192}")
        for n in range(2):
            E.vm(f"buffer_load_dwordx4 v{V_VD+n}, {sr(S_V)}, s46 offen" + (" offset:1024" if n else "") + f"{o.nt_kv} lds", (lambda t_, n_: (lambda c: ('V', t_, n_)))(t, n))
    dma_k(0); dma_k(1)
    for qt in range(4):
        for s in range(4):
            E.vm(f"buffer_load_dwordx4 {ar(A_QR + qt*16 + s*4)}, v{V_Q+qt}, {sr(S_Q)}, 0 offen offset:{s*64}{o.nt_q}",
                 (lambda qt_, s_: (lambda c: ('Q', 0, qt_, s_)))(qt, s))
    E.i(f"s_add_u32 s{S_O}, s50, s60"); E.i(f"s_addc_u32 s{S_O+1}, s51, 0"); E.i(f"s_and_b32 s{S_O+1}, s{S_O+1}, 0xffff")
    E.i(f"s_mov_b32 s{S_O+2}, s63"); E.i(f"s_mov_b32 s{S_O+3}, 0x20000")
    E.i(f"s_add_u32 s{S_O1B}, s50, s61"); E.i(f"s_addc_u32 s{S_O1B+1}, s51, 0"); E.i(f"s_and_b32 s{S_O1B+1}, s{S_O1B+1}, 0xffff")
    E.i(f"s_add_u32 s{S_Q}, s4, s61"); E.i(f"s_addc_u32 s{S_Q+1}, s5, 0"); E.i(f"s_and_b32 s{S_Q+1}, s{S_Q+1}, 0xffff")
    E.i(f"s_mov_b32 s{S_Q+2}, 0")
    dma_v(0)
    for t in range(2, 8):
        dma_k(t); dma_v(t-1)
        if o.fill_dummy and t in (2, 3):
            for s in range(4):
                E.vm(f"buffer_load_dwordx4 {ar(192 + s*4)}, v{V_Q}, {sr(S_Q)}, 0 offen", lambda c: ('X',))
    E.i(f"s_add_u32 s{S_KOFF}, s{S_KOFF}, {8*8192}")
    E.i(f"s_add_u32 s{S_VOFF}, s{S_VOFF}, {7*8192}")
    E.vw(lambda c: [('K', 0, 0), ('K', 0, 1), ('K', 1, 0), ('K', 1, 1)], "bar")
    for kt in range(2):
        for s in range(4): k_read(E, 0, kt, s)

    US = emit_prescale_fill(o)
    PZ = emit_iter(o, 0, 'zero')
    P = [emit_iter(o, p, 'full') for p in range(8)]
    PD = emit_iter(o, 7, 'drain')
    EP = emit_epilogue(o)

    trace = [(E, dict(unit=0, j=-1))]
    for u in range(2):
        j0 = 16*u
        trace.append((US, dict(unit=u, j=j0)))
        trace.append((PZ, dict(unit=u, j=j0)))
        for j in range(j0+1, j0+15): trace.append((P[j % 8], dict(unit=u, j=j)))
        trace.append((PD, dict(unit=u, j=j0+15)))
        trace.append((EP, dict(unit=u, j=j0+15)))
    issued = []; Nsite = {}
    if o.code_prefetch: issued += [('C',), ('C',)]
    maxout = 0
    for blk, c in trace:
        for it in blk.items:
            if it[0] == 'vm': issued.append(it[2](c))
            elif it[0] == 'vw':
                need = it[2](c)
                idx = -1
                for t in need:
                    cand = [n for n, x in enumerate(issued) if x[:len(t)] == t]
                    if not cand:
                        if t[0] in 'KV' and t[1] >= 32: continue
                        raise Exception(f"{blk.name} {c}: need {t} never issued")
                    idx = max(idx, cand[-1])
                n = len(issued) - 1 - idx if idx >= 0 else 63
                Nsite[it[1]] = min(Nsite.get(it[1], 63), n)
    def render(blk):
        out = []
        for it in blk.items:
            if it[0] == 'i':
                t = it[1]
                out.append(t if t.endswith(":") else "    " + t)
            elif it[0] == 'vm': out.append("    " + it[1])
            else:
                out.append(f"    s_waitcnt vmcnt({Nsite[it[1]]})")
                if it[3] == "bar": out.append("    s_barrier")
        return out
    o.Nsite = Nsite
    A += render(E)
    A += render(US)
    A += render(PZ)
    A.append(f"    s_mov_b32 s{S_PASS}, 0")
    A.append("    .p2align 6")
    A.append("L_LOOP:")
    for p in range(1, 7): A += render(P[p])
    A.append(f"    s_cmp_lg_u32 s{S_PASS}, 0")
    A.append("    s_cbranch_scc1 L_DRAIN")
    A += render(P[7]); A += render(P[0])
    A.append(f"    s_mov_b32 s{S_PASS}, 1")
    A.append("    s_branch L_LOOP")
    A.append("L_DRAIN:")
    A += render(PD)
    A.append("    s_nop 7")
    A += render(EP)
    A.append(f"    s_cmp_lg_u32 s{S_UNIT}, 0")
    A.append("    s_cbranch_scc1 L_FIN")
    A.append(f"    s_mov_b32 s{S_UNIT}, 1")
    A.append(f"    s_mov_b32 s{S_O}, s{S_O1B}")
    A.append(f"    s_mov_b32 s{S_O+1}, s{S_O1B+1}")
    A.append(f"    s_mov_b32 s{S_O+2}, s{S_QNR}")
    A.append(f"    s_mov_b32 s{S_QNR}, 0")
    A.append("    s_branch L_USTART")
    A.append("L_FIN:")
    if o.stamps:
        A.append("    s_waitcnt vmcnt(0)")
        A.append(f"    s_memrealtime s[{S_STAMP+6}:{S_STAMP+7}]")
        A.append("    s_waitcnt lgkmcnt(0)")
        A.append("    s_mov_b32 s72, s66\n    s_and_b32 s73, s67, 0xffff\n    s_mov_b32 s74, 268435456\n    s_mov_b32 s75, 0x20000")
        A.append(f"    v_mov_b32 v32, s{S_STAMP+4}\n    v_mov_b32 v33, s{S_STAMP+6}\n    s_lshl_b32 s46, s2, 3\n    v_mov_b32 v34, s46")
        A.append("    v_cmp_eq_u32 vcc, 0, v0\n    s_and_saveexec_b64 s[46:47], vcc\n    s_cbranch_execz L_END")
        A.append("    buffer_store_dwordx2 v[32:33], v34, s[72:75], 0 offen")
    A.append("L_END:")
    A.append("    s_endpgm")
    A.append("L_CODE_END:")
    A.append(f""".section .rodata,"a"
.p2align 6
.amdhsa_kernel {o.name}
  .amdhsa_next_free_vgpr 512
  .amdhsa_next_free_sgpr 96
  .amdhsa_accum_offset 256
  .amdhsa_group_segment_fixed_size 0
  .amdhsa_kernarg_size 48
  .amdhsa_user_sgpr_count 2
  .amdhsa_user_sgpr_kernarg_segment_ptr 1
  .amdhsa_system_sgpr_workgroup_id_x 1
  .amdhsa_float_denorm_mode_32 3
.end_amdhsa_kernel
""")
    txt = "\n".join(A)
    txt = txt.replace("    PREF2", "    s_add_u32 s52, s52, L_CODE_END-L_PC0-16384\n    s_addc_u32 s53, s53, 0\n    global_load_dword v63, v1, s[52:53]")
    return txt

if __name__ == "__main__":
    ap = argparse.ArgumentParser()
    ap.add_argument("-o", default="standalone__gqa_softmax__near_ridge.s")
    ap.add_argument("--set", action="append", default=[])
    a = ap.parse_args()
    o = Opt()
    for kv in a.set:
        k, v = kv.split("=", 1)
        cur = getattr(o, k)
        if isinstance(cur, bool): v = v in ("1", "True", "true")
        elif isinstance(cur, int): v = int(v)
        else: v = v.replace("_", " ") if k.startswith("nt") else v
        setattr(o, k, v)
    txt = gen(o)
    open(a.o, "w").write(txt)
    print("waits:", {k[0] + ":" + str(k[1]): v for k, v in o.Nsite.items()}, file=sys.stderr)
```

```python
import sys, math, struct, argparse

NAME = "standalone__gqa_softmax__near_ridge_kernel"
def f2u(x): return struct.unpack("<I", struct.pack("<f", x))[0]

class Opt:
    name = NAME
    nt_kv = " nt"; nt_q = " nt"; nt_o = " nt"; nt_of = " nt"
    stamps = False
    pv_order = "qt"
    alt = False
    code_prefetch = True
    nodma = False; nobar = False; noadd = False; nods = False; noexp = False
    mfsum = False
    dma_gaps = "4,14,24,36,46,56"
    slow = True
    dist = 4

V_AK = 4; V_AV = 8; V_KD = 16; V_VD = 18; V_Q = 20; V_O = 24; V_L = 28
V_T = 32
V_S = 64
V_OACC = 128
A_Q = 0; A_K = 64; A_V = 96; A_QR = 128; A_OS = 192

S_K = 8; S_V = 12; S_Q = 16; S_O = 20; S_OP = 24
S_KE = 28; S_KO = 29; S_VE = 30; S_VO = 31
S_W = 32; S_UNIT = 33; S_C = 34
S_H = 36; S_BAD = 37; S_U1OFF = 38; S_U1SZ = 39; S_U0OFF = 40; S_U0SZ = 41
S_PQ = 42
S_PO = 44
S_T = 46
S_MK = 56
S_MV = 64
S_PK = 72; S_PV = 74
S_ST = 76

def Sreg(buf, qt, kt): return V_S + buf*32 + qt*8 + kt*4
def vr(a, n=4): return f"v[{a}:{a+n-1}]"
def ar(a, n=4): return f"a[{a}:{a+n-1}]"
def sr(a, n=4): return f"s[{a}:{a+n-1}]"

class Block:
    def __init__(self, name):
        self.name = name; self.items = []; self.ds_q = []
    def i(self, text): self.items.append(('i', text))
    def label(self, l): self.items.append(('i', l + ":"))
    def vm(self, text, tagfn): self.items.append(('vm', text, tagfn))
    def vw(self, needfn, extra=""): self.items.append(('vw', (self.name, len(self.items)), needfn, extra))
    def ds(self, text, tag): self.i(text); self.ds_q.append(tag)
    def ds_need(self, tags):
        idx = -1
        for t in tags:
            if t in self.ds_q: idx = max(idx, self.ds_q.index(t))
        if idx < 0: return
        n = min(len(self.ds_q) - 1 - idx, 15)
        self.i(f"s_waitcnt lgkmcnt({n})")
        self.ds_q = self.ds_q[len(self.ds_q) - n:] if n > 0 else []

def mfma(d, a, b, c): return f"v_mfma_f32_16x16x32_bf16 {d}, {a}, {b}, {c}"
def k_read(blk, slot, kt, s):
    blk.ds(f"ds_read_b128 {ar(A_K + kt*16 + s*4)}, v{V_AK+s} offset:{slot*8192 + kt*4096}", ('K', kt, s))
def v_read(blk, slot, T, hh):
    blk.ds(f"ds_read_b64_tr_b16 {ar(A_V + T*4 + hh*2, 2)}, v{V_AV+T} offset:{slot*8192 + hh*4096}", ('V', T, hh))
KALL = [('K', kt, s) for kt in range(2) for s in range(4)]

def qk_mfmas(buf, qts=range(4)):
    out = []
    for qt in qts:
        for kt in range(2):
            for s in range(4):
                d = vr(Sreg(buf, qt, kt))
                out.append((mfma(d, ar(A_K + kt*16 + s*4), ar(A_Q + qt*16 + s*4), "0" if s == 0 else d), [('K', kt, s)]))
    return out
def pv_mfmas(buf, zero, order):
    out = []
    seq = [(qt, T) for qt in range(4) for T in range(8)] if order == "qt" else [(qt, T) for T in range(8) for qt in range(4)]
    for qt, T in seq:
        d = vr(V_OACC + qt*32 + T*4)
        out.append((mfma(d, ar(A_V + T*4), vr(Sreg(buf, qt, 0)), "0" if zero else d), [('V', T, 0), ('V', T, 1)]))
    return out

def sm_items(buf, qt, o):
    base = Sreg(buf, qt, 0)
    gaps = [[] for _ in range(16)]
    for e in range(8):
        if not o.noexp: gaps[2*e].append(f"v_exp_f32 v{base+e}, v{base+e}")
        if not o.noadd: gaps[2*e+1].append(f"v_add_f32 v{V_L+qt}, v{V_L+qt}, v{base+e}")
    for k in range(4):
        gaps[4*k+3].append(f"v_cvt_pk_bf16_f32 v{base+k}, v{base+2*k}, v{base+2*k+1}")
    return gaps
def sm_flat(buf, qt):
    base = Sreg(buf, qt, 0)
    e = lambda i: f"v_exp_f32 v{base+i}, v{base+i}"
    a = lambda i: f"v_add_f32 v{V_L+qt}, v{V_L+qt}, v{base+i}"
    c = lambda k: f"v_cvt_pk_bf16_f32 v{base+k}, v{base+2*k}, v{base+2*k+1}"
    return [e(0), e(1), a(0), e(2), a(1), e(3), c(0), a(2), e(4), a(3), e(5), c(1), a(4), e(6), a(5), e(7), c(2), a(6), a(7), c(3)]

def sched(o):
    if o.alt: return dict(KE=(5, 2), KO=(7, -2), VE=(5, -2), VO=(3, 2))
    d = o.dist
    return dict(KE=(d+2, 0), KO=(d+2, 0), VE=(d, 0), VO=(d, 0))
def ktile(o, c, j):
    a, b = sched(o)['KE' if j % 2 == 0 else 'KO']; return j + a + b*c['h']
def vtile(o, c, j):
    a, b = sched(o)['VE' if j % 2 == 0 else 'VO']; return j + a + b*c['h']

def dma_ops(o, j):
    p = j % 8
    sk = S_KE if j % 2 == 0 else S_KO
    sv = S_VE if j % 2 == 0 else S_VO
    G = lambda c: c['unit']*16 + j
    ops = []
    ops.append(([f"s_mov_b32 m0, s{S_MK+p}"], f"buffer_load_dwordx4 v{V_KD}, {sr(S_K)}, s{sk} offen{o.nt_kv} lds", lambda c: ('K', ktile(o, c, G(c)), 0), []))
    ops.append(([], f"buffer_load_dwordx4 v{V_KD+1}, {sr(S_K)}, s{sk} offen offset:1024{o.nt_kv} lds", lambda c: ('K', ktile(o, c, G(c)), 1), [f"s_add_u32 s{sk}, s{sk}, 16384"]))
    ops.append(([f"s_mov_b32 m0, s{S_MV+p}"], f"buffer_load_dwordx4 v{V_VD}, {sr(S_V)}, s{sv} offen{o.nt_kv} lds", lambda c: ('V', vtile(o, c, G(c)), 0), []))
    ops.append(([], f"buffer_load_dwordx4 v{V_VD+1}, {sr(S_V)}, s{sv} offen offset:1024{o.nt_kv} lds", lambda c: ('V', vtile(o, c, G(c)), 1), [f"s_add_u32 s{sv}, s{sv}, 16384"]))
    qp = {j: [j] for j in range(15)}; qp[7] = [7, 15]
    qp = {0: [0], 1: [1], 2: [2], 3: [3], 4: [4], 5: [5], 6: [6], 7: [7, 8], 8: [9], 9: [10], 10: [11], 11: [12], 12: [13], 13: [14], 14: [15], 15: []}
    for n in qp[j]:
        qt, s = n // 4, n % 4
        ops.append(([], f"buffer_load_dwordx4 {ar(A_QR + n*4)}, v{V_Q+qt}, {sr(S_Q)}, 0 offen offset:{s*64}{o.nt_q}",
                    (lambda n_: (lambda c: ('Q', c['unit']+1, n_ // 4, n_ % 4)))(n), []))
    qt, tp = j // 4, j % 4
    ops.append(([], f"buffer_store_dwordx4 {ar(A_OS + j*4)}, v{V_O+qt}, {sr(S_OP)}, 0 offen offset:{tp*64}{o.nt_o}",
                lambda c: ('O', c['unit']-1, j), []))
    return ops

def need_bj(j):
    def f(c):
        g = c['unit']*16 + j
        return [('K', g+2, 0), ('K', g+2, 1), ('V', g, 0), ('V', g, 1)]
    return f

def emit_iter(o, j):
    b = Block(f"I{j}")
    cb = j % 2; nb = 1 - cb; p = j % 8
    pv = pv_mfmas(cb, j == 0, o.pv_order)
    dmas = dma_ops(o, j)
    if j == 15:
        b.vw(need_bj(j), "bar")
        for T in range(8):
            for hh in range(2): v_read(b, p, T, hh)
        sm3 = sm_flat(cb, 3)
        pre = sm3[:6]; sm3 = sm3[6:]
        for x in pre: b.i(x)
        di = 0
        for n, (txt, deps) in enumerate(pv):
            b.ds_need(deps)
            if o.pv_order != "qt" and n == 0:
                for x in sm3: b.i(x)
                sm3 = []
                b.i("s_nop 1")
            b.i(txt)
            if n % 4 == 0 and di < len(dmas):
                for x in dmas[di][0]: b.i(x)
            if n % 4 == 1 and di < len(dmas):
                pre_s, t, tag, post = dmas[di]; di += 1
                b.vm(t, tag)
                for x in post: b.i(x)
            k = 0
            while sm3 and k < 2:
                x = sm3.pop(0); b.i(x); k += 2 if 'exp' in x else 1
        assert di == len(dmas) and not sm3
        return b
    b.ds_q = list(KALL)
    qk = qk_mfmas(nb)
    mf = qk + pv
    gaps = [[] for _ in range(64)]
    for w0, (buf, qt) in ((0, (cb, 3)), (16, (nb, 0)), (32, (nb, 1)), (48, (nb, 2))):
        for g, lst in enumerate(sm_items(buf, qt, o)): gaps[w0+g] += lst
    vreads = [(T, hh) for T in range(8) for hh in range(2)]
    kreads = [(kt, s) for kt in range(2) for s in range(4)]
    kslot = (j + 2) % 8
    dg = [int(x) for x in o.dma_gaps.split(",")]
    if len(dmas) > len(dg): dg = dg + [62]
    dg = dg[:len(dmas)]
    place = dict(zip(dg, dmas))
    b.ds_need(mf[0][1])
    for g in range(64):
        b.i(mf[g][0])
        if g == 0: b.vw(need_bj(j), "bar")
        if g + 1 < 64: b.ds_need(mf[g+1][1])
        if g + 1 in place:
            for x in place[g+1][0]: b.i(x)
        if g in place:
            b.vm(place[g][1], place[g][2])
            for x in place[g][3]: b.i(x)
        if g % 2 == 1:
            if g < 32:
                T, hh = vreads[g//2]
                if not o.nods: v_read(b, p, T, hh)
            elif g < 48:
                kt, s = kreads[(g-33)//2]
                if not o.nods: k_read(b, kslot, kt, s)
        for x in gaps[g]: b.i(x)
    assert o.nods or b.ds_q == KALL[-len(b.ds_q):], b.ds_q
    return b

def prescale(b, qt, src):
    t = V_T
    for g in range(4):
        r0 = qt*16 + g*4
        raw = []
        for x in range(4):
            k, idx = src(r0 + x)
            if k == 'a':
                b.i(f"v_accvgpr_read_b32 v{t+x}, a{idx}"); raw.append(t+x)
            else: raw.append(idx)
        for x in range(4):
            b.i(f"v_lshlrev_b32 v{t+4+2*x}, 16, v{raw[x]}")
            b.i(f"v_and_b32 v{t+5+2*x}, 0xffff0000, v{raw[x]}")
        for x in range(4): b.i(f"v_pk_mul_f32 {vr(t+4+2*x,2)}, {vr(t+4+2*x,2)}, {sr(S_C,2)}")
        for x in range(4): b.i(f"v_cvt_pk_bf16_f32 v{t+x}, v{t+4+2*x}, v{t+5+2*x}")
        for x in range(4): b.i(f"v_accvgpr_write_b32 a{A_Q+r0+x}, v{t+x}")

def emit_us1(o):
    b = Block("US1")
    for qt in range(4): b.i(f"v_mov_b32 v{V_L+qt}, 0")
    sm = [sm_flat(0, qt) for qt in range(3)]
    for qt in range(4):
        b.vw((lambda qt_: (lambda c: [('Q', 1, qt_, s) for s in range(4)]))(qt))
        prescale(b, qt, lambda r: ('a', A_QR + r))
        b.i("s_nop 1")
        for (txt, deps) in qk_mfmas(0, [qt]): b.i(txt)
        if qt == 3:
            for kt in range(2):
                for s in range(4): k_read(b, 1, kt, s)
        if qt >= 1:
            pass
    b.i("s_nop 3")
    for qt in range(3):
        for x in sm[qt]: b.i(x)
    return b

def lreduce_check(b, o):
    t = V_T
    for qt in range(4): b.i(f"v_mov_b32 v{t+qt}, v{V_L+qt}")
    b.i("s_nop 0")
    for qt in range(4): b.i(f"v_permlane32_swap_b32 v{V_L+qt}, v{t+qt}")
    for qt in range(4): b.i(f"v_add_f32 v{V_L+qt}, v{V_L+qt}, v{t+qt}")
    for qt in range(4): b.i(f"v_mov_b32 v{t+qt}, v{V_L+qt}")
    b.i("s_nop 0")
    for qt in range(4): b.i(f"v_permlane16_swap_b32 v{V_L+qt}, v{t+qt}")
    for qt in range(4): b.i(f"v_add_f32 v{V_L+qt}, v{V_L+qt}, v{t+qt}")
    for qt in range(4): b.i(f"v_rcp_f32 v{t+8+2*qt}, v{V_L+qt}")
    b.i(f"v_min3_f32 v{t+4}, v{V_L}, v{V_L+1}, v{V_L+2}")
    b.i(f"v_add_f32 v{t+5}, v{V_L}, v{V_L+1}")
    b.i(f"v_add_f32 v{t+6}, v{V_L+2}, v{V_L+3}")
    b.i(f"v_min_f32 v{t+4}, v{t+4}, v{V_L+3}")
    b.i(f"v_add_f32 v{t+5}, v{t+5}, v{t+6}")
    b.i(f"v_cmp_le_f32 vcc, {hex(f2u(2.0**-30))}, v{t+4}")
    b.i(f"s_mov_b64 {sr(S_T,2)}, vcc")
    b.i(f"v_cmp_ge_f32 vcc, {hex(f2u(2.0**42))}, v{t+5}")
    b.i(f"s_and_b64 {sr(S_T,2)}, {sr(S_T,2)}, vcc")
    b.i(f"s_cmp_eq_u64 {sr(S_T,2)}, -1")
    b.i(f"s_cselect_b32 s{S_T}, 0, 1")
    b.i(f"s_lshl_b32 s{S_T}, s{S_T}, s{S_UNIT}")
    b.i(f"s_or_b32 s{S_BAD}, s{S_BAD}, s{S_T}")

def emit_ep(o, final):
    b = Block("EP1" if final else "EP0")
    t = V_T
    lreduce_check(b, o)
    pend = None
    for qt in range(4):
        for tp in range(4):
            x = V_OACC + qt*32 + tp*8
            for h in range(4):
                b.i(f"v_pk_mul_f32 {vr(x+2*h,2)}, {vr(x+2*h,2)}, {vr(t+8+2*qt,2)} op_sel_hi:[1,0]")
            b.i(f"v_cvt_pk_bf16_f32 v{x}, v{x}, v{x+1}")
            b.i(f"v_cvt_pk_bf16_f32 v{x+1}, v{x+2}, v{x+3}")
            b.i(f"v_cvt_pk_bf16_f32 v{x+2}, v{x+4}, v{x+5}")
            b.i(f"v_cvt_pk_bf16_f32 v{x+3}, v{x+6}, v{x+7}")
            if pend: pend()
            def fin(x=x, qt=qt, tp=tp):
                b.i(f"v_permlane16_swap_b32 v{x}, v{x+2}")
                b.i(f"v_permlane16_swap_b32 v{x+1}, v{x+3}")
                if final:
                    b.vm(f"buffer_store_dwordx4 {vr(x)}, v{V_O+qt}, {sr(S_O)}, 0 offen offset:{tp*64}{o.nt_of}", lambda c: ('O', 1, qt*4+tp))
                else:
                    for r in range(4): b.i(f"v_accvgpr_write_b32 a{A_OS + (qt*4+tp)*4 + r}, v{x+r}")
            pend = fin
    b.i("s_nop 1")
    pend()
    return b

def gen(o):
    c_scale = math.log2(math.e) / math.sqrt(128.0)
    A = []
    A.append(f"""; GQA softmax attention forward: hand-scheduled 16x16x32 bf16 MFMA kernel (emitted by my generator script gen/gen2.py)
; @launch grid=(256,1,1) block=(256,1,1) lds=163840
.amdgcn_target "amdgcn-amd-amdhsa--gfx950"
.text
.globl {o.name}
.p2align 8
.type {o.name},@function
{o.name}:""")
    E = Block("EN")
    E.i("s_cmp_ge_u32 s2, 256")
    E.i("s_cbranch_scc1 L_END")
    E.i(f"s_load_dwordx4 s[4:7], s[0:1], 0")
    E.i(f"s_load_dwordx4 s[48:51], s[0:1], 16")
    if o.stamps:
        E.i("s_load_dwordx2 s[88:89], s[0:1], 40")
        E.i("s_memrealtime s[90:91]")
    if o.code_prefetch:
        E.i("s_getpc_b64 s[52:53]")
        E.label("L_PC0")
        E.i("v_lshlrev_b32 v1, 6, v0")
        E.i("v_add_u32 v2, 16384, v1")
        E.i("v_min_u32 v1, L_CODE_END-L_PC0-4, v1")
        E.i("v_min_u32 v2, L_CODE_END-L_PC0-4, v2")
        E.vm("global_load_dword v62, v1, s[52:53]", lambda c: ('C',))
        E.vm("global_load_dword v63, v2, s[52:53]", lambda c: ('C',))
    E.i("v_lshrrev_b32 v1, 6, v0")
    E.i("v_and_b32 v2, 15, v0")
    E.i(f"v_readfirstlane_b32 s{S_W}, v1")
    E.i("v_bfe_u32 v3, v0, 4, 2")
    E.i("v_lshl_add_u32 v33, v1, 3, v3")
    for n in range(2):
        E.i(f"v_add_u32 v34, {4*n}, v33")
        E.i("v_and_b32 v35, 15, v34")
        E.i("v_xor_b32 v35, v35, v2")
        E.i("v_lshlrev_b32 v35, 4, v35")
        E.i("v_lshl_add_u32 v35, v34, 8, v35")
        E.i(f"v_subrev_u32 v{V_KD+n}, {1024*n}, v35")
    E.i("v_lshl_add_u32 v36, v1, 6, v2")
    E.i("v_lshlrev_b32 v36, 8, v36")
    E.i("v_lshl_add_u32 v37, v3, 4, v36")
    for qt in range(4): E.i(f"v_add_u32 v{V_Q+qt}, {qt*4096}, v37")
    E.i("s_and_b32 s54, s2, 7")
    E.i("s_lshr_b32 s55, s2, 3")
    E.i(f"s_and_b32 s{S_H}, s55, 1")
    E.i("s_and_b32 s55, s55, 30")
    E.i("s_lshl_b32 s54, s54, 5")
    E.i("s_add_u32 s54, s54, s55")
    E.i("s_lshl_b32 s46, s54, 17")
    E.i("s_add_u32 s47, s46, 0x40000")
    E.i("s_mul_i32 s54, s54, 126976")
    E.i(f"s_lshl_b32 s55, s{S_H}, 16")
    E.i(f"s_add_u32 s{S_U0OFF}, s54, s55")
    E.i(f"s_add_u32 s{S_U1OFF}, s54, 126976+65536")
    E.i(f"s_sub_u32 s{S_U1OFF}, s{S_U1OFF}, s55")
    E.i(f"s_lshl_b32 s55, s{S_H}, 12")
    E.i(f"s_sub_u32 s{S_U0SZ}, 65536, s55")
    E.i(f"s_add_u32 s{S_U1SZ}, s55, 61440")
    E.i(f"s_lshl_b32 s52, s{S_W}, 11")
    E.i("s_waitcnt lgkmcnt(0)")
    E.i(f"s_mov_b32 s{S_K}, s6"); E.i(f"s_and_b32 s{S_K+1}, s7, 0xffff"); E.i(f"s_mov_b32 s{S_K+2}, s47"); E.i(f"s_mov_b32 s{S_K+3}, 0x20000")
    E.i(f"s_add_u32 s{S_Q}, s4, s{S_U0OFF}"); E.i(f"s_addc_u32 s{S_Q+1}, s5, 0"); E.i(f"s_and_b32 s{S_Q+1}, s{S_Q+1}, 0xffff")
    E.i(f"s_mov_b32 s{S_Q+2}, s{S_U0SZ}"); E.i(f"s_mov_b32 s{S_Q+3}, 0x20000")
    def dma(kind, tfn, hdep):
        t0 = tfn
        base = 0 if kind == 'K' else 0x10000
        vd = V_KD if kind == 'K' else V_VD
        srd = S_K if kind == 'K' else S_V
        if hdep == 0:
            E.i(f"s_add_u32 m0, s52, {base + (t0 % 8)*8192}")
            E.i(f"s_add_u32 s53, s46, {t0*8192}")
        else:
            E.i(f"s_lshl_b32 s54, s{S_H}, 13")
            op = "s_add_u32" if hdep > 0 else "s_sub_u32"
            E.i(f"s_add_u32 s55, s52, {base + (t0 % 8)*8192}")
            E.i(f"{op} m0, s55, s54")
            E.i(f"s_add_u32 s53, s46, {t0*8192}")
            E.i(f"{op} s53, s53, s54")
        for n in range(2):
            E.vm(f"buffer_load_dwordx4 v{vd+n}, {sr(srd)}, s53 offen" + (" offset:1024" if n else "") + f"{o.nt_kv} lds",
                 (lambda n_: (lambda c: (kind, t0 + hdep*c['h'], n_)))(n))
    RAWQ = V_OACC
    def qload(qt):
        for s in range(4):
            E.vm(f"buffer_load_dwordx4 {vr(RAWQ + qt*16 + s*4)}, v{V_Q+qt}, {sr(S_Q)}, 0 offen offset:{s*64}{o.nt_q}",
                 (lambda qt_, s_: (lambda c: ('Q', 0, qt_, s_)))(qt, s))
    dma('K', 0, 0); dma('K', 1, 0)
    qload(0); qload(1)
    E.i(f"s_mov_b32 s{S_V}, s48"); E.i(f"s_and_b32 s{S_V+1}, s49, 0xffff"); E.i(f"s_mov_b32 s{S_V+2}, s47"); E.i(f"s_mov_b32 s{S_V+3}, 0x20000")
    E.i(f"s_mov_b32 s{S_PQ}, s4"); E.i(f"s_mov_b32 s{S_PQ+1}, s5"); E.i(f"s_mov_b32 s{S_PO}, s50"); E.i(f"s_mov_b32 s{S_PO+1}, s51")
    E.i(f"s_mov_b32 s{S_PK}, s6"); E.i(f"s_mov_b32 s{S_PK+1}, s7"); E.i(f"s_mov_b32 s{S_PV}, s48"); E.i(f"s_mov_b32 s{S_PV+1}, s49")
    for s in range(4):
        E.i(f"v_or_b32 v32, {4*s}, v3")
        E.i("v_xor_b32 v32, v32, v2")
        E.i("v_lshlrev_b32 v32, 4, v32")
        E.i(f"v_lshl_add_u32 v{V_AK+s}, v2, 8, v32")
    E.i("v_lshrrev_b32 v33, 2, v2")
    E.i("v_lshl_add_u32 v34, v3, 2, v33")
    E.i("v_and_b32 v35, 7, v34")
    E.i("v_and_b32 v38, 3, v2")
    E.i("v_lshlrev_b32 v38, 3, v38")
    E.i("v_lshl_add_u32 v38, v34, 8, v38")
    E.i("v_add_u32 v38, 0x10000, v38")
    for T in range(8):
        E.i(f"v_xor_b32 v32, {T}, v35")
        E.i(f"v_lshl_add_u32 v{V_AV+T}, v32, 5, v38")
    E.i("v_lshl_add_u32 v33, v1, 3, v3")
    for n in range(2):
        E.i(f"v_add_u32 v34, {4*n}, v33")
        E.i("v_and_b32 v35, 7, v34")
        E.i("v_lshlrev_b32 v35, 1, v35")
        E.i("v_xor_b32 v35, v35, v2")
        E.i("v_lshlrev_b32 v35, 4, v35")
        E.i("v_lshl_add_u32 v35, v34, 8, v35")
        E.i(f"v_subrev_u32 v{V_VD+n}, {1024*n}, v35")
    E.i("v_and_b32 v35, 1, v3")
    E.i("v_lshl_add_u32 v35, v35, 5, v36")
    E.i("v_lshrrev_b32 v37, 1, v3")
    E.i("v_lshl_add_u32 v35, v37, 4, v35")
    for qt in range(4): E.i(f"v_add_u32 v{V_O+qt}, {qt*4096}, v35")
    E.i(f"s_mov_b32 s{S_C}, {hex(f2u(c_scale))}"); E.i(f"s_mov_b32 s{S_C+1}, {hex(f2u(c_scale))}")
    E.i(f"s_mov_b32 s{S_UNIT}, 0"); E.i(f"s_mov_b32 s{S_BAD}, 0")
    sc = sched(o)
    E.i(f"s_lshl_b32 s54, s{S_H}, 14")
    for reg, key, j0 in ((S_KE, 'KE', 0), (S_KO, 'KO', 1), (S_VE, 'VE', 0), (S_VO, 'VO', 1)):
        a, b = sc[key]
        E.i(f"s_add_u32 s{reg}, s46, {(j0 + a)*8192}")
        if b > 0: E.i(f"s_add_u32 s{reg}, s{reg}, s54")
        if b < 0: E.i(f"s_sub_u32 s{reg}, s{reg}, s54")
    for p in range(8):
        for reg, key, base in ((S_MK, 'KE' if p % 2 == 0 else 'KO', 0), (S_MV, 'VE' if p % 2 == 0 else 'VO', 0x10000)):
            a, b = sc[key]
            E.i(f"s_mov_b32 s53, {((p + a) % 8)*8192 + 65536}")
            if b > 0: E.i("s_add_u32 s53, s53, s54")
            if b < 0: E.i("s_sub_u32 s53, s53, s54")
            E.i("s_and_b32 s53, s53, 0xffff")
            E.i("s_add_u32 s53, s53, s52")
            E.i(f"s_add_u32 s{reg+p}, s53, {base}")
    E.i(f"s_add_u32 s{S_O}, s50, s{S_U1OFF}"); E.i(f"s_addc_u32 s{S_O+1}, s51, 0"); E.i(f"s_and_b32 s{S_O+1}, s{S_O+1}, 0xffff")
    E.i(f"s_mov_b32 s{S_O+2}, s{S_U1SZ}"); E.i(f"s_mov_b32 s{S_O+3}, 0x20000")
    E.i(f"s_add_u32 s{S_OP}, s50, s{S_U0OFF}"); E.i(f"s_addc_u32 s{S_OP+1}, s51, 0"); E.i(f"s_and_b32 s{S_OP+1}, s{S_OP+1}, 0xffff")
    E.i(f"s_mov_b32 s{S_OP+2}, 0"); E.i(f"s_mov_b32 s{S_OP+3}, 0x20000")
    qload(2)
    for qt in range(4): E.i(f"v_mov_b32 v{V_L+qt}, 0")
    fill = [[], [], [], []]
    if o.alt:
        rest = [('V', 0, 0), ('K', 2, 0), ('V', 1, 0), ('K', 3, 0), ('V', 2, 0), ('K', 4, 0), ('V', 3, 1), ('K', 6, -1)]
    else:
        rest = []
        for t in range(o.dist): rest += [('V', t, 0), ('K', t+2, 0)]
    E.vw(lambda c: [('Q', 0, 0, s) for s in range(4)])
    prescale(E, 0, lambda r: ('v', RAWQ + r))
    qload(3)
    E.i(f"s_add_u32 s{S_Q}, s4, s{S_U1OFF}"); E.i(f"s_addc_u32 s{S_Q+1}, s5, 0"); E.i(f"s_and_b32 s{S_Q+1}, s{S_Q+1}, 0xffff")
    E.i(f"s_mov_b32 s{S_Q+2}, s{S_U1SZ}")
    E.vw(lambda c: [('K', 0, 0), ('K', 0, 1), ('K', 1, 0), ('K', 1, 1)], "bar")
    for kt in range(2):
        for s in range(4): k_read(E, 0, kt, s)
    E.vw(lambda c: [('Q', 0, 1, s) for s in range(4)])
    prescale(E, 1, lambda r: ('v', RAWQ + r))
    dma(*rest.pop(0)); dma(*rest.pop(0))
    E.ds_need(KALL)
    for (txt, deps) in qk_mfmas(0, [0, 1]): E.i(txt)
    E.vw(lambda c: [('Q', 0, 2, s) for s in range(4)])
    prescale(E, 2, lambda r: ('v', RAWQ + r))
    dma(*rest.pop(0)); dma(*rest.pop(0))
    E.i("s_nop 0")
    for (txt, deps) in qk_mfmas(0, [2]): E.i(txt)
    for x in sm_flat(0, 0): E.i(x)
    E.vw(lambda c: [('Q', 0, 3, s) for s in range(4)])
    prescale(E, 3, lambda r: ('v', RAWQ + r))
    dma(*rest.pop(0)); dma(*rest.pop(0))
    E.i("s_nop 0")
    for (txt, deps) in qk_mfmas(0, [3]): E.i(txt)
    for kt in range(2):
        for s in range(4): k_read(E, 1, kt, s)
    for x in sm_flat(0, 1): E.i(x)
    while rest: dma(*rest.pop(0))
    for x in sm_flat(0, 2): E.i(x)

    IT = [emit_iter(o, j) for j in range(16)]
    EP0 = emit_ep(o, False); EP1 = emit_ep(o, True); US1 = emit_us1(o)

    Nsite = {}
    for h in range(2):
        trace = [(E, dict(unit=0, h=h))]
        for j in range(16): trace.append((IT[j], dict(unit=0, h=h)))
        trace += [(EP0, dict(unit=0, h=h)), (US1, dict(unit=1, h=h))]
        for j in range(16): trace.append((IT[j], dict(unit=1, h=h)))
        trace.append((EP1, dict(unit=1, h=h)))
        issued = []
        for blk, c in trace:
            for it in blk.items:
                if it[0] == 'vm': issued.append(it[2](c))
                elif it[0] == 'vw':
                    idx = -1
                    for t in it[2](c):
                        cand = [n for n, x in enumerate(issued) if x[:len(t)] == t]
                        if not cand:
                            if t[0] in 'KV' and t[1] >= 32: continue
                            raise Exception(f"{blk.name} {c}: need {t} never issued")
                        idx = max(idx, cand[-1])
                    n = len(issued) - 1 - idx if idx >= 0 else 63
                    Nsite[it[1]] = min(Nsite.get(it[1], 63), n)
        for kind in 'KV':
            for t in range(32):
                cnt = sum(1 for x in issued if x[0] == kind and x[1] == t)
                assert cnt == 2, (h, kind, t, cnt)
    o.Nsite = Nsite
    def render(blk):
        out = []
        for it in blk.items:
            if it[0] == 'i':
                t = it[1]; out.append(t if t.endswith(":") else "    " + t)
            elif it[0] == 'vm':
                if not (o.nodma and blk.name.startswith("I")): out.append("    " + it[1])
            else:
                nn = Nsite[it[1]]
                out.append(f"    s_waitcnt vmcnt({nn})")
                if it[3] == "bar" and not (o.nobar and blk.name != "EN"): out.append("    s_barrier")
        return out
    NPER = 5
    def stamp(k):
        if not o.stamps: return []
        return [f"    s_memtime s[{S_ST}:{S_ST+1}]", f"    s_memrealtime s[{S_ST+2}:{S_ST+3}]", "    s_waitcnt lgkmcnt(0)",
                f"    v_mov_b32 v60, s{S_ST}", f"    v_mov_b32 v61, s{S_ST+2}", f"    s_mul_i32 s{S_ST+4}, s{S_UNIT}, {NPER*8}",
                f"    s_add_u32 s{S_ST+4}, s{S_ST+4}, s{S_ST+5}", f"    v_mov_b32 v59, s{S_ST+4}", f"    ds_write_b64 v59, v[60:61] offset:{k*8}"]
    if o.stamps:
        E.items.insert(len(E.items) - 1, ('i', "s_nop 0"))
    en = render(E)
    if o.stamps:
        k = next(n for n, l in enumerate(en) if "s_waitcnt lgkmcnt(0)" in l)
        en[k+1:k+1] = [f"    s_lshl_b32 s{S_ST+5}, s{S_W}, 8", f"    s_add_u32 s{S_ST+5}, s{S_ST+5}, 131072"]
        k = next(n for n, l in enumerate(en) if "v_pk_mul_f32" in l)
        en[k:k] = stamp(0)
    A += en
    if o.nodma: A.append("    s_waitcnt vmcnt(0)\n    s_barrier")
    A.append("    .p2align 6")
    A.append("L_UNIT:")
    A += stamp(1)
    for j in range(15): A += render(IT[j])
    A += stamp(2)
    A += render(IT[15])
    A.append("    s_nop 7")
    A += stamp(3)
    A.append(f"    s_cmp_lg_u32 s{S_UNIT}, 0")
    A.append("    s_cbranch_scc1 L_FINAL")
    A += render(EP0)
    A += stamp(4)
    A.append(f"    s_mov_b32 s{S_UNIT}, 1")
    A.append(f"    s_mov_b32 s{S_OP+2}, s{S_U0SZ}")
    A.append(f"    s_mov_b32 s{S_Q+2}, 0")
    A += stamp(0)
    A += render(US1)
    A.append("    s_branch L_UNIT")
    A.append("L_FINAL:")
    A += render(EP1)
    A += stamp(4)
    if o.stamps:
        A.append("    s_waitcnt vmcnt(0)")
        A.append("    s_memrealtime s[92:93]")
        A.append("    s_waitcnt lgkmcnt(0)")
        A.append("    s_mov_b32 s96, s88\n    s_and_b32 s97, s89, 0xffff\n    s_mov_b32 s98, 268435456\n    s_mov_b32 s99, 0x20000")
        A.append("    v_mov_b32 v32, s90\n    v_mov_b32 v33, s92\n    s_lshl_b32 s46, s2, 3\n    v_mov_b32 v34, s46")
        A.append("    v_cmp_eq_u32 vcc, 0, v0\n    s_and_saveexec_b64 s[46:47], vcc")
        A.append("    buffer_store_dwordx2 v[32:33], v34, s[96:99], 0 offen")
        A.append("    s_mov_b64 exec, -1")
        A.append("    v_and_b32 v35, 63, v0\n    v_lshlrev_b32 v36, 3, v35")
        A.append(f"    v_add_u32 v36, s{S_ST+5}, v36\n    ds_read_b64 v[38:39], v36")
        A.append(f"    s_lshl_b32 s46, s2, 2\n    s_add_u32 s46, s46, s{S_W}\n    s_mul_i32 s46, s46, {2*NPER*8}\n    s_add_u32 s46, s46, 65536")
        A.append("    v_lshlrev_b32 v37, 3, v35\n    v_add_u32 v37, s46, v37")
        A.append(f"    v_cmp_gt_u32 vcc, {2*NPER}, v35\n    s_and_saveexec_b64 s[46:47], vcc\n    s_waitcnt lgkmcnt(0)")
        A.append("    buffer_store_dwordx2 v[38:39], v37, s[96:99], 0 offen\n    s_waitcnt vmcnt(0)")
    A.append("L_END:")
    A.append("    s_endpgm")
    A.append("L_CODE_END:")
    A.append(f""".section .rodata,"a"
.p2align 6
.amdhsa_kernel {o.name}
  .amdhsa_next_free_vgpr 512
  .amdhsa_next_free_sgpr 102
  .amdhsa_accum_offset 256
  .amdhsa_group_segment_fixed_size 0
  .amdhsa_kernarg_size 48
  .amdhsa_user_sgpr_count 2
  .amdhsa_user_sgpr_kernarg_segment_ptr 1
  .amdhsa_system_sgpr_workgroup_id_x 1
  .amdhsa_float_denorm_mode_32 3
.end_amdhsa_kernel
""")
    return "\n".join(A)

def main(argv):
    ap = argparse.ArgumentParser()
    ap.add_argument("-o", default="standalone__gqa_softmax__near_ridge.s")
    ap.add_argument("--set", action="append", default=[])
    a = ap.parse_args(argv)
    o = Opt()
    for kv in a.set:
        k, v = kv.split("=", 1)
        cur = getattr(o, k)
        if isinstance(cur, bool): v = v in ("1", "True", "true")
        elif isinstance(cur, int): v = int(v)
        else: v = v.replace("_", " ") if k.startswith("nt") else v
        setattr(o, k, v)
    txt = gen(o)
    open(a.o, "w").write(txt)
    print("waits:", {k[0] + ":" + str(k[1]): v for k, v in o.Nsite.items()}, file=sys.stderr)
if __name__ == "__main__": main(sys.argv[1:])
```

```python
import sys, math, struct, argparse

NAME = "standalone__gqa_softmax__near_ridge_kernel"
def f2u(x): return struct.unpack("<I", struct.pack("<f", x))[0]

class Opt:
    name = NAME
    nt_kv = " nt"; nt_q = " nt"; nt_o = " nt"; nt_of = " nt"
    stamps = False
    pv_order = "qt"
    alt = False
    code_prefetch = True
    nodma = False; nobar = False; noadd = False; nods = False; noexp = False
    mfsum = False
    dma_gaps = "4,14,24,36,46,56"
    slow = True
    dist = 4
    noq = False
    noo = False
    hot = False

V_AK = 4; V_AV = 8; V_KD = 16; V_VD = 18; V_Q = 20; V_O = 24; V_L = 28
V_T = 48
V_L4 = 28
V_ONE = 44
V_S = 64
V_OACC = 128
A_Q = 0; A_K = 64; A_V = 96; A_QR = 128; A_OS = 192

S_K = 8; S_V = 12; S_Q = 16; S_O = 20; S_OP = 24
S_KE = 28; S_KO = 29; S_VE = 30; S_VO = 31
S_W = 32; S_UNIT = 33; S_C = 34
S_H = 36; S_BAD = 37; S_U1OFF = 38; S_U1SZ = 39; S_U0OFF = 40; S_U0SZ = 41
S_PQ = 42
S_PO = 44
S_T = 46
S_MK = 56
S_MV = 64
S_PK = 72; S_PV = 74
S_ST = 76

def Sreg(buf, qt, kt): return V_S + buf*32 + qt*8 + kt*4
def vr(a, n=4): return f"v[{a}:{a+n-1}]"
def ar(a, n=4): return f"a[{a}:{a+n-1}]"
def sr(a, n=4): return f"s[{a}:{a+n-1}]"

class Block:
    def __init__(self, name):
        self.name = name; self.items = []; self.ds_q = []
    def i(self, text): self.items.append(('i', text))
    def label(self, l): self.items.append(('i', l + ":"))
    def vm(self, text, tagfn): self.items.append(('vm', text, tagfn))
    def vw(self, needfn, extra=""): self.items.append(('vw', (self.name, len(self.items)), needfn, extra))
    def ds(self, text, tag): self.i(text); self.ds_q.append(tag)
    def ds_need(self, tags):
        idx = -1
        for t in tags:
            if t in self.ds_q: idx = max(idx, self.ds_q.index(t))
        if idx < 0: return
        n = min(len(self.ds_q) - 1 - idx, 15)
        self.i(f"s_waitcnt lgkmcnt({n})")
        self.ds_q = self.ds_q[len(self.ds_q) - n:] if n > 0 else []

def mfma(d, a, b, c): return f"v_mfma_f32_16x16x32_bf16 {d}, {a}, {b}, {c}"
def k_read(blk, slot, kt, s):
    blk.ds(f"ds_read_b128 {ar(A_K + kt*16 + s*4)}, v{V_AK+s} offset:{slot*8192 + kt*4096}", ('K', kt, s))
def v_read(blk, slot, T, hh):
    blk.ds(f"ds_read_b64_tr_b16 {ar(A_V + T*4 + hh*2, 2)}, v{V_AV+T} offset:{slot*8192 + hh*4096}", ('V', T, hh))
KALL = [('K', kt, s) for kt in range(2) for s in range(4)]

def qk_mfmas(buf, qts=range(4)):
    out = []
    for qt in qts:
        for kt in range(2):
            for s in range(4):
                d = vr(Sreg(buf, qt, kt))
                out.append((mfma(d, ar(A_K + kt*16 + s*4), ar(A_Q + qt*16 + s*4), "0" if s == 0 else d), [('K', kt, s)]))
    return out
def pv_mfmas(buf, zero, order, mfsum=False):
    out = []
    seq = [(qt, T) for qt in range(4) for T in range(8)] if order == "qt" else [(qt, T) for T in range(8) for qt in range(4)]
    for qt, T in seq:
        if mfsum and ((order == "qt" and T == 0) or (order != "qt" and T == 0)):
            dl = vr(V_L4 + qt*4)
            out.append((mfma(dl, vr(V_ONE), vr(Sreg(buf, qt, 0)), "0" if zero else dl), []))
        d = vr(V_OACC + qt*32 + T*4)
        out.append((mfma(d, ar(A_V + T*4), vr(Sreg(buf, qt, 0)), "0" if zero else d), [('V', T, 0), ('V', T, 1)]))
    return out

def sm_items(buf, qt, o):
    base = Sreg(buf, qt, 0)
    gaps = [[] for _ in range(16)]
    for e in range(8):
        if not o.noexp: gaps[2*e].append(f"v_exp_f32 v{base+e}, v{base+e}")
        if not o.noadd: gaps[2*e+1].append(f"v_add_f32 v{V_L+qt}, v{V_L+qt}, v{base+e}")
    for k in range(4):
        gaps[4*k+3].append(f"v_cvt_pk_bf16_f32 v{base+k}, v{base+2*k}, v{base+2*k+1}")
    return gaps
def sm_flat(buf, qt, o=None):
    base = Sreg(buf, qt, 0)
    e = lambda i: f"v_exp_f32 v{base+i}, v{base+i}"
    a = lambda i: f"v_add_f32 v{V_L+qt}, v{V_L+qt}, v{base+i}"
    c = lambda k: f"v_cvt_pk_bf16_f32 v{base+k}, v{base+2*k}, v{base+2*k+1}"
    if o is not None and o.mfsum:
        return [e(0), e(1), e(2), c(0), e(3), e(4), c(1), e(5), e(6), c(2), e(7), "s_nop 0", c(3)]
    return [e(0), e(1), a(0), e(2), a(1), e(3), c(0), a(2), e(4), a(3), e(5), c(1), a(4), e(6), a(5), e(7), c(2), a(6), a(7), c(3)]

def sched(o):
    if o.alt: return dict(KE=(5, 2), KO=(7, -2), VE=(5, -2), VO=(3, 2))
    d = o.dist
    return dict(KE=(d+2, 0), KO=(d+2, 0), VE=(d, 0), VO=(d, 0))
def ktile(o, c, j):
    a, b = sched(o)['KE' if j % 2 == 0 else 'KO']; return j + a + b*c['h']
def vtile(o, c, j):
    a, b = sched(o)['VE' if j % 2 == 0 else 'VO']; return j + a + b*c['h']

def dma_ops(o, j):
    p = j % 8
    sk = S_KE if j % 2 == 0 else S_KO
    sv = S_VE if j % 2 == 0 else S_VO
    G = lambda c: c['unit']*16 + j
    ops = []
    ops.append(([f"s_mov_b32 m0, s{S_MK+p}"], f"buffer_load_dwordx4 v{V_KD}, {sr(S_K)}, s{sk} offen{o.nt_kv} lds", lambda c: ('K', ktile(o, c, G(c)), 0), []))
    ops.append(([], f"buffer_load_dwordx4 v{V_KD+1}, {sr(S_K)}, s{sk} offen offset:1024{o.nt_kv} lds", lambda c: ('K', ktile(o, c, G(c)), 1), [f"s_add_u32 s{sk}, s{sk}, {0 if o.hot else 16384}"]))
    ops.append(([f"s_mov_b32 m0, s{S_MV+p}"], f"buffer_load_dwordx4 v{V_VD}, {sr(S_V)}, s{sv} offen{o.nt_kv} lds", lambda c: ('V', vtile(o, c, G(c)), 0), []))
    ops.append(([], f"buffer_load_dwordx4 v{V_VD+1}, {sr(S_V)}, s{sv} offen offset:1024{o.nt_kv} lds", lambda c: ('V', vtile(o, c, G(c)), 1), [f"s_add_u32 s{sv}, s{sv}, {0 if o.hot else 16384}"]))
    qp = {j: [j] for j in range(15)}; qp[7] = [7, 15]
    qp = {0: [0], 1: [1], 2: [2], 3: [3], 4: [4], 5: [5], 6: [6], 7: [7, 8], 8: [9], 9: [10], 10: [11], 11: [12], 12: [13], 13: [14], 14: [15], 15: []}
    for n in ([] if o.noq else qp[j]):
        qt, s = n // 4, n % 4
        ops.append(([], f"buffer_load_dwordx4 {ar(A_QR + n*4)}, v{V_Q+qt}, {sr(S_Q)}, 0 offen offset:{s*64}{o.nt_q}",
                    (lambda n_: (lambda c: ('Q', c['unit']+1, n_ // 4, n_ % 4)))(n), []))
    qt, tp = j // 4, j % 4
    if not o.noo: ops.append(([], f"buffer_store_dwordx4 {ar(A_OS + j*4)}, v{V_O+qt}, {sr(S_OP)}, 0 offen offset:{tp*64}{o.nt_o}",
                lambda c: ('O', c['unit']-1, j), []))
    return ops

def need_bj(j):
    def f(c):
        g = c['unit']*16 + j
        return [('K', g+2, 0), ('K', g+2, 1), ('V', g, 0), ('V', g, 1)]
    return f

def emit_iter_mfsum(o, b, j, mf, dmas):
    cb = j % 2; nb = 1 - cb; p = j % 8
    NG = len(mf); assert NG == 68
    valu = [[] for _ in range(NG)]; mem = [[] for _ in range(NG)]; pre = [[] for _ in range(NG)]
    for q, (buf, qt) in enumerate(((cb, 3), (nb, 0), (nb, 1), (nb, 2))):
        base = Sreg(buf, qt, 0); g0 = 17*q
        for e in range(8):
            if not o.noexp: valu[g0 + 2*e].append(f"v_exp_f32 v{base+e}, v{base+e}")
        for k in range(4): valu[g0 + 4*k + 3].append(f"v_cvt_pk_bf16_f32 v{base+k}, v{base+2*k}, v{base+2*k+1}")
    vreads = [(T, hh) for T in range(8) for hh in range(2)]
    kreads = [(kt, s) for kt in range(2) for s in range(4)]
    kslot = (j + 2) % 8
    for n, (T, hh) in enumerate(vreads):
        g = 17*(n // 8) + 2*(n % 8) + 1
        mem[g].append(('v', T, hh))
    for n, (kt, s) in enumerate(kreads):
        g = 17*(2 + n // 4) + 4*(n % 4) + 1
        mem[g].append(('k', kt, s))
    vg = [16, 33, 50, 67, 39, 56, 43]
    for d, g in zip(dmas, vg):
        mem[g].append(('d', d))
        pre[g-1] += d[0]
    b.ds_need(mf[0][1])
    for g in range(NG):
        b.i(mf[g][0])
        if g == 0: b.vw(need_bj(j), "bar")
        if g + 1 < NG: b.ds_need(mf[g+1][1])
        for x in pre[g]: b.i(x)
        for m in mem[g]:
            if m[0] == 'v':
                if not o.nods: v_read(b, p, m[1], m[2])
            elif m[0] == 'k':
                if not o.nods: k_read(b, kslot, m[1], m[2])
            else:
                b.vm(m[1][1], m[1][2])
                for x in m[1][3]: b.i(x)
        for x in valu[g]: b.i(x)
    assert o.nods or b.ds_q == KALL[-len(b.ds_q):], b.ds_q
    return b

def emit_iter(o, j):
    b = Block(f"I{j}")
    cb = j % 2; nb = 1 - cb; p = j % 8
    pv = pv_mfmas(cb, j == 0, o.pv_order, o.mfsum)
    dmas = dma_ops(o, j)
    if j == 15:
        b.vw(need_bj(j), "bar")
        for T in range(8):
            for hh in range(2): v_read(b, p, T, hh)
        sm3 = sm_flat(cb, 3, o)
        pre = sm3[:6]; sm3 = sm3[6:]
        for x in pre: b.i(x)
        di = 0
        for n, (txt, deps) in enumerate(pv):
            b.ds_need(deps)
            if o.pv_order != "qt" and n == 0:
                for x in sm3: b.i(x)
                sm3 = []
                b.i("s_nop 1")
            b.i(txt)
            if n % 4 == 0 and di < len(dmas):
                for x in dmas[di][0]: b.i(x)
            if n % 4 == 1 and di < len(dmas):
                pre_s, t, tag, post = dmas[di]; di += 1
                b.vm(t, tag)
                for x in post: b.i(x)
            k = 0
            while sm3 and k < 2:
                x = sm3.pop(0); b.i(x); k += 2 if 'exp' in x else 1
        assert di == len(dmas) and not sm3
        return b
    b.ds_q = list(KALL)
    qk = qk_mfmas(nb)
    mf = qk + pv
    if o.mfsum: return emit_iter_mfsum(o, b, j, mf, dmas)
    gaps = [[] for _ in range(64)]
    for w0, (buf, qt) in ((0, (cb, 3)), (16, (nb, 0)), (32, (nb, 1)), (48, (nb, 2))):
        for g, lst in enumerate(sm_items(buf, qt, o)): gaps[w0+g] += lst
    vreads = [(T, hh) for T in range(8) for hh in range(2)]
    kreads = [(kt, s) for kt in range(2) for s in range(4)]
    kslot = (j + 2) % 8
    dg = [int(x) for x in o.dma_gaps.split(",")]
    if len(dmas) > len(dg): dg = dg + [62]
    dg = dg[:len(dmas)]
    place = dict(zip(dg, dmas))
    b.ds_need(mf[0][1])
    for g in range(64):
        b.i(mf[g][0])
        if g == 0: b.vw(need_bj(j), "bar")
        if g + 1 < 64: b.ds_need(mf[g+1][1])
        if g + 1 in place:
            for x in place[g+1][0]: b.i(x)
        if g in place:
            b.vm(place[g][1], place[g][2])
            for x in place[g][3]: b.i(x)
        if g % 2 == 1:
            if g < 32:
                T, hh = vreads[g//2]
                if not o.nods: v_read(b, p, T, hh)
            elif g < 48:
                kt, s = kreads[(g-33)//2]
                if not o.nods: k_read(b, kslot, kt, s)
        for x in gaps[g]: b.i(x)
    assert o.nods or b.ds_q == KALL[-len(b.ds_q):], b.ds_q
    return b

def prescale(b, qt, src):
    t = V_T
    for g in range(4):
        r0 = qt*16 + g*4
        raw = []
        for x in range(4):
            k, idx = src(r0 + x)
            if k == 'a':
                b.i(f"v_accvgpr_read_b32 v{t+x}, a{idx}"); raw.append(t+x)
            else: raw.append(idx)
        for x in range(4):
            b.i(f"v_lshlrev_b32 v{t+4+2*x}, 16, v{raw[x]}")
            b.i(f"v_and_b32 v{t+5+2*x}, 0xffff0000, v{raw[x]}")
        for x in range(4): b.i(f"v_pk_mul_f32 {vr(t+4+2*x,2)}, {vr(t+4+2*x,2)}, {sr(S_C,2)}")
        for x in range(4): b.i(f"v_cvt_pk_bf16_f32 v{t+x}, v{t+4+2*x}, v{t+5+2*x}")
        for x in range(4): b.i(f"v_accvgpr_write_b32 a{A_Q+r0+x}, v{t+x}")

def emit_us1(o):
    b = Block("US1")
    for qt in range(4): b.i(f"v_mov_b32 v{V_L+qt}, 0")
    sm = [sm_flat(0, qt, o) for qt in range(3)]
    for qt in range(4):
        b.vw((lambda qt_: (lambda c: [('Q', 1, qt_, s) for s in range(4)]))(qt))
        prescale(b, qt, lambda r: ('a', A_QR + r))
        b.i("s_nop 1")
        for (txt, deps) in qk_mfmas(0, [qt]): b.i(txt)
        if qt == 3:
            for kt in range(2):
                for s in range(4): k_read(b, 1, kt, s)
        if qt >= 1:
            pass
    b.i("s_nop 3")
    for qt in range(3):
        for x in sm[qt]: b.i(x)
    return b

def lreduce_check(b, o):
    t = V_T
    if o.mfsum:
        for qt in range(4): b.i(f"v_mov_b32 v{V_L+qt}, v{V_L4+4*qt}") if qt else None
    else:
        for qt in range(4): b.i(f"v_mov_b32 v{t+qt}, v{V_L+qt}")
        b.i("s_nop 0")
        for qt in range(4): b.i(f"v_permlane32_swap_b32 v{V_L+qt}, v{t+qt}")
        for qt in range(4): b.i(f"v_add_f32 v{V_L+qt}, v{V_L+qt}, v{t+qt}")
        for qt in range(4): b.i(f"v_mov_b32 v{t+qt}, v{V_L+qt}")
        b.i("s_nop 0")
        for qt in range(4): b.i(f"v_permlane16_swap_b32 v{V_L+qt}, v{t+qt}")
        for qt in range(4): b.i(f"v_add_f32 v{V_L+qt}, v{V_L+qt}, v{t+qt}")
    for qt in range(4): b.i(f"v_rcp_f32 v{t+8+2*qt}, v{V_L+qt}")
    b.i(f"v_min3_f32 v{t+4}, v{V_L}, v{V_L+1}, v{V_L+2}")
    b.i(f"v_add_f32 v{t+5}, v{V_L}, v{V_L+1}")
    b.i(f"v_add_f32 v{t+6}, v{V_L+2}, v{V_L+3}")
    b.i(f"v_min_f32 v{t+4}, v{t+4}, v{V_L+3}")
    b.i(f"v_add_f32 v{t+5}, v{t+5}, v{t+6}")
    b.i(f"v_cmp_le_f32 vcc, {hex(f2u(2.0**-30))}, v{t+4}")
    b.i(f"s_mov_b64 {sr(S_T,2)}, vcc")
    b.i(f"v_cmp_ge_f32 vcc, {hex(f2u(2.0**42))}, v{t+5}")
    b.i(f"s_and_b64 {sr(S_T,2)}, {sr(S_T,2)}, vcc")
    b.i(f"s_cmp_eq_u64 {sr(S_T,2)}, -1")
    b.i(f"s_cselect_b32 s{S_T}, 0, 1")
    b.i(f"s_lshl_b32 s{S_T}, s{S_T}, s{S_UNIT}")
    b.i(f"s_or_b32 s{S_BAD}, s{S_BAD}, s{S_T}")

def emit_ep(o, final):
    b = Block("EP1" if final else "EP0")
    t = V_T
    lreduce_check(b, o)
    pend = None
    for qt in range(4):
        for tp in range(4):
            x = V_OACC + qt*32 + tp*8
            for h in range(4):
                b.i(f"v_pk_mul_f32 {vr(x+2*h,2)}, {vr(x+2*h,2)}, {vr(t+8+2*qt,2)} op_sel_hi:[1,0]")
            b.i(f"v_cvt_pk_bf16_f32 v{x}, v{x}, v{x+1}")
            b.i(f"v_cvt_pk_bf16_f32 v{x+1}, v{x+2}, v{x+3}")
            b.i(f"v_cvt_pk_bf16_f32 v{x+2}, v{x+4}, v{x+5}")
            b.i(f"v_cvt_pk_bf16_f32 v{x+3}, v{x+6}, v{x+7}")
            if pend: pend()
            def fin(x=x, qt=qt, tp=tp):
                b.i(f"v_permlane16_swap_b32 v{x}, v{x+2}")
                b.i(f"v_permlane16_swap_b32 v{x+1}, v{x+3}")
                if final:
                    b.vm(f"buffer_store_dwordx4 {vr(x)}, v{V_O+qt}, {sr(S_O)}, 0 offen offset:{tp*64}{o.nt_of}", lambda c: ('O', 1, qt*4+tp))
                else:
                    for r in range(4): b.i(f"v_accvgpr_write_b32 a{A_OS + (qt*4+tp)*4 + r}, v{x+r}")
            pend = fin
    b.i("s_nop 1")
    pend()
    return b

def gen(o):
    c_scale = math.log2(math.e) / math.sqrt(128.0)
    A = []
    A.append(f"""; GQA softmax attention forward: hand-scheduled 16x16x32 bf16 MFMA kernel (emitted by my generator script gen/gen2.py)
; @launch grid=(256,1,1) block=(256,1,1) lds=163840
.amdgcn_target "amdgcn-amd-amdhsa--gfx950"
.text
.globl {o.name}
.p2align 8
.type {o.name},@function
{o.name}:""")
    E = Block("EN")
    E.i("s_cmp_ge_u32 s2, 256")
    E.i("s_cbranch_scc1 L_END")
    E.i(f"s_load_dwordx4 s[4:7], s[0:1], 0")
    E.i(f"s_load_dwordx4 s[48:51], s[0:1], 16")
    if o.stamps:
        E.i("s_load_dwordx2 s[88:89], s[0:1], 40")
        E.i("s_memrealtime s[90:91]")
    if o.code_prefetch:
        E.i("s_getpc_b64 s[52:53]")
        E.label("L_PC0")
        E.i("v_lshlrev_b32 v1, 6, v0")
        E.i("v_add_u32 v2, 16384, v1")
        E.i("v_min_u32 v1, L_CODE_END-L_PC0-4, v1")
        E.i("v_min_u32 v2, L_CODE_END-L_PC0-4, v2")
        E.vm("global_load_dword v63, v1, s[52:53]", lambda c: ('C',))
        E.vm("global_load_dword v63, v2, s[52:53]", lambda c: ('C',))
    E.i("v_lshrrev_b32 v1, 6, v0")
    E.i("v_and_b32 v2, 15, v0")
    E.i(f"v_readfirstlane_b32 s{S_W}, v1")
    E.i("v_bfe_u32 v3, v0, 4, 2")
    E.i("v_lshl_add_u32 v33, v1, 3, v3")
    for n in range(2):
        E.i(f"v_add_u32 v34, {4*n}, v33")
        E.i("v_and_b32 v35, 15, v34")
        E.i("v_xor_b32 v35, v35, v2")
        E.i("v_lshlrev_b32 v35, 4, v35")
        E.i("v_lshl_add_u32 v35, v34, 8, v35")
        E.i(f"v_subrev_u32 v{V_KD+n}, {1024*n}, v35")
    E.i("v_lshl_add_u32 v36, v1, 6, v2")
    E.i("v_lshlrev_b32 v36, 8, v36")
    E.i("v_lshl_add_u32 v37, v3, 4, v36")
    for qt in range(4): E.i(f"v_add_u32 v{V_Q+qt}, {qt*4096}, v37")
    E.i("s_and_b32 s54, s2, 7")
    E.i("s_lshr_b32 s55, s2, 3")
    E.i(f"s_and_b32 s{S_H}, s55, 1")
    E.i("s_and_b32 s55, s55, 30")
    E.i("s_lshl_b32 s54, s54, 5")
    E.i("s_add_u32 s54, s54, s55")
    E.i("s_lshl_b32 s46, s54, 17")
    E.i("s_add_u32 s47, s46, 0x40000")
    E.i("s_mul_i32 s54, s54, 126976")
    E.i(f"s_lshl_b32 s55, s{S_H}, 16")
    E.i(f"s_add_u32 s{S_U0OFF}, s54, s55")
    E.i(f"s_add_u32 s{S_U1OFF}, s54, 126976+65536")
    E.i(f"s_sub_u32 s{S_U1OFF}, s{S_U1OFF}, s55")
    E.i(f"s_lshl_b32 s55, s{S_H}, 12")
    E.i(f"s_sub_u32 s{S_U0SZ}, 65536, s55")
    E.i(f"s_add_u32 s{S_U1SZ}, s55, 61440")
    E.i(f"s_lshl_b32 s52, s{S_W}, 11")
    E.i("s_waitcnt lgkmcnt(0)")
    E.i(f"s_mov_b32 s{S_K}, s6"); E.i(f"s_and_b32 s{S_K+1}, s7, 0xffff"); E.i(f"s_mov_b32 s{S_K+2}, s47"); E.i(f"s_mov_b32 s{S_K+3}, 0x20000")
    E.i(f"s_add_u32 s{S_Q}, s4, s{S_U0OFF}"); E.i(f"s_addc_u32 s{S_Q+1}, s5, 0"); E.i(f"s_and_b32 s{S_Q+1}, s{S_Q+1}, 0xffff")
    E.i(f"s_mov_b32 s{S_Q+2}, s{S_U0SZ}"); E.i(f"s_mov_b32 s{S_Q+3}, 0x20000")
    def dma(kind, tfn, hdep):
        t0 = tfn
        base = 0 if kind == 'K' else 0x10000
        vd = V_KD if kind == 'K' else V_VD
        srd = S_K if kind == 'K' else S_V
        if hdep == 0:
            E.i(f"s_add_u32 m0, s52, {base + (t0 % 8)*8192}")
            E.i(f"s_add_u32 s53, s46, {t0*8192}")
        else:
            E.i(f"s_lshl_b32 s54, s{S_H}, 13")
            op = "s_add_u32" if hdep > 0 else "s_sub_u32"
            E.i(f"s_add_u32 s55, s52, {base + (t0 % 8)*8192}")
            E.i(f"{op} m0, s55, s54")
            E.i(f"s_add_u32 s53, s46, {t0*8192}")
            E.i(f"{op} s53, s53, s54")
        for n in range(2):
            E.vm(f"buffer_load_dwordx4 v{vd+n}, {sr(srd)}, s53 offen" + (" offset:1024" if n else "") + f"{o.nt_kv} lds",
                 (lambda n_: (lambda c: (kind, t0 + hdep*c['h'], n_)))(n))
    RAWQ = V_OACC
    def qload(qt):
        for s in range(4):
            E.vm(f"buffer_load_dwordx4 {vr(RAWQ + qt*16 + s*4)}, v{V_Q+qt}, {sr(S_Q)}, 0 offen offset:{s*64}{o.nt_q}",
                 (lambda qt_, s_: (lambda c: ('Q', 0, qt_, s_)))(qt, s))
    dma('K', 0, 0); dma('K', 1, 0)
    qload(0); qload(1)
    E.i(f"s_mov_b32 s{S_V}, s48"); E.i(f"s_and_b32 s{S_V+1}, s49, 0xffff"); E.i(f"s_mov_b32 s{S_V+2}, s47"); E.i(f"s_mov_b32 s{S_V+3}, 0x20000")
    E.i(f"s_mov_b32 s{S_PQ}, s4"); E.i(f"s_mov_b32 s{S_PQ+1}, s5"); E.i(f"s_mov_b32 s{S_PO}, s50"); E.i(f"s_mov_b32 s{S_PO+1}, s51")
    E.i(f"s_mov_b32 s{S_PK}, s6"); E.i(f"s_mov_b32 s{S_PK+1}, s7"); E.i(f"s_mov_b32 s{S_PV}, s48"); E.i(f"s_mov_b32 s{S_PV+1}, s49")
    for s in range(4):
        E.i(f"v_or_b32 v32, {4*s}, v3")
        E.i("v_xor_b32 v32, v32, v2")
        E.i("v_lshlrev_b32 v32, 4, v32")
        E.i(f"v_lshl_add_u32 v{V_AK+s}, v2, 8, v32")
    E.i("v_lshrrev_b32 v33, 2, v2")
    E.i("v_lshl_add_u32 v34, v3, 2, v33")
    E.i("v_and_b32 v35, 7, v34")
    E.i("v_and_b32 v38, 3, v2")
    E.i("v_lshlrev_b32 v38, 3, v38")
    E.i("v_lshl_add_u32 v38, v34, 8, v38")
    E.i("v_add_u32 v38, 0x10000, v38")
    for T in range(8):
        E.i(f"v_xor_b32 v32, {T}, v35")
        E.i(f"v_lshl_add_u32 v{V_AV+T}, v32, 5, v38")
    E.i("v_lshl_add_u32 v33, v1, 3, v3")
    for n in range(2):
        E.i(f"v_add_u32 v34, {4*n}, v33")
        E.i("v_and_b32 v35, 7, v34")
        E.i("v_lshlrev_b32 v35, 1, v35")
        E.i("v_xor_b32 v35, v35, v2")
        E.i("v_lshlrev_b32 v35, 4, v35")
        E.i("v_lshl_add_u32 v35, v34, 8, v35")
        E.i(f"v_subrev_u32 v{V_VD+n}, {1024*n}, v35")
    E.i("v_and_b32 v35, 1, v3")
    E.i("v_lshl_add_u32 v35, v35, 5, v36")
    E.i("v_lshrrev_b32 v37, 1, v3")
    E.i("v_lshl_add_u32 v35, v37, 4, v35")
    for qt in range(4): E.i(f"v_add_u32 v{V_O+qt}, {qt*4096}, v35")
    E.i(f"s_mov_b32 s{S_C}, {hex(f2u(c_scale))}"); E.i(f"s_mov_b32 s{S_C+1}, {hex(f2u(c_scale))}")
    if o.mfsum:
        E.i("v_and_b32 v32, 3, v2")
        E.i("v_mov_b32 v33, 0x3f803f80")
        E.i("v_cmp_eq_u32 vcc, 0, v32")
        E.i("s_nop 1")
        E.i("v_cndmask_b32 v33, 0, v33, vcc")
        for r in range(4): E.i(f"v_mov_b32 v{V_ONE+r}, v33")
    E.i(f"s_mov_b32 s{S_UNIT}, 0"); E.i(f"s_mov_b32 s{S_BAD}, 0")
    sc = sched(o)
    E.i(f"s_lshl_b32 s54, s{S_H}, 14")
    for reg, key, j0 in ((S_KE, 'KE', 0), (S_KO, 'KO', 1), (S_VE, 'VE', 0), (S_VO, 'VO', 1)):
        a, b = sc[key]
        E.i(f"s_add_u32 s{reg}, s46, {(j0 + a)*8192}")
        if b > 0: E.i(f"s_add_u32 s{reg}, s{reg}, s54")
        if b < 0: E.i(f"s_sub_u32 s{reg}, s{reg}, s54")
    for p in range(8):
        for reg, key, base in ((S_MK, 'KE' if p % 2 == 0 else 'KO', 0), (S_MV, 'VE' if p % 2 == 0 else 'VO', 0x10000)):
            a, b = sc[key]
            E.i(f"s_mov_b32 s53, {((p + a) % 8)*8192 + 65536}")
            if b > 0: E.i("s_add_u32 s53, s53, s54")
            if b < 0: E.i("s_sub_u32 s53, s53, s54")
            E.i("s_and_b32 s53, s53, 0xffff")
            E.i("s_add_u32 s53, s53, s52")
            E.i(f"s_add_u32 s{reg+p}, s53, {base}")
    E.i(f"s_add_u32 s{S_O}, s50, s{S_U1OFF}"); E.i(f"s_addc_u32 s{S_O+1}, s51, 0"); E.i(f"s_and_b32 s{S_O+1}, s{S_O+1}, 0xffff")
    E.i(f"s_mov_b32 s{S_O+2}, s{S_U1SZ}"); E.i(f"s_mov_b32 s{S_O+3}, 0x20000")
    E.i(f"s_add_u32 s{S_OP}, s50, s{S_U0OFF}"); E.i(f"s_addc_u32 s{S_OP+1}, s51, 0"); E.i(f"s_and_b32 s{S_OP+1}, s{S_OP+1}, 0xffff")
    E.i(f"s_mov_b32 s{S_OP+2}, 0"); E.i(f"s_mov_b32 s{S_OP+3}, 0x20000")
    qload(2)
    for qt in range(4): E.i(f"v_mov_b32 v{V_L+qt}, 0")
    fill = [[], [], [], []]
    if o.alt:
        rest = [('V', 0, 0), ('K', 2, 0), ('V', 1, 0), ('K', 3, 0), ('V', 2, 0), ('K', 4, 0), ('V', 3, 1), ('K', 6, -1)]
    else:
        rest = []
        for t in range(o.dist): rest += [('V', t, 0), ('K', t+2, 0)]
    E.vw(lambda c: [('Q', 0, 0, s) for s in range(4)])
    prescale(E, 0, lambda r: ('v', RAWQ + r))
    qload(3)
    E.i(f"s_add_u32 s{S_Q}, s4, s{S_U1OFF}"); E.i(f"s_addc_u32 s{S_Q+1}, s5, 0"); E.i(f"s_and_b32 s{S_Q+1}, s{S_Q+1}, 0xffff")
    E.i(f"s_mov_b32 s{S_Q+2}, s{S_U1SZ}")
    E.vw(lambda c: [('K', 0, 0), ('K', 0, 1), ('K', 1, 0), ('K', 1, 1)], "bar")
    for kt in range(2):
        for s in range(4): k_read(E, 0, kt, s)
    E.vw(lambda c: [('Q', 0, 1, s) for s in range(4)])
    prescale(E, 1, lambda r: ('v', RAWQ + r))
    dma(*rest.pop(0)); dma(*rest.pop(0))
    E.ds_need(KALL)
    for (txt, deps) in qk_mfmas(0, [0, 1]): E.i(txt)
    E.vw(lambda c: [('Q', 0, 2, s) for s in range(4)])
    prescale(E, 2, lambda r: ('v', RAWQ + r))
    dma(*rest.pop(0)); dma(*rest.pop(0))
    E.i("s_nop 0")
    for (txt, deps) in qk_mfmas(0, [2]): E.i(txt)
    for x in sm_flat(0, 0, o): E.i(x)
    E.vw(lambda c: [('Q', 0, 3, s) for s in range(4)])
    prescale(E, 3, lambda r: ('v', RAWQ + r))
    dma(*rest.pop(0)); dma(*rest.pop(0))
    E.i("s_nop 0")
    for (txt, deps) in qk_mfmas(0, [3]): E.i(txt)
    for kt in range(2):
        for s in range(4): k_read(E, 1, kt, s)
    for x in sm_flat(0, 1, o): E.i(x)
    while rest: dma(*rest.pop(0))
    for x in sm_flat(0, 2, o): E.i(x)

    IT = [emit_iter(o, j) for j in range(16)]
    EP0 = emit_ep(o, False); EP1 = emit_ep(o, True); US1 = emit_us1(o)

    Nsite = {}
    for h in range(2):
        trace = [(E, dict(unit=0, h=h))]
        for j in range(16): trace.append((IT[j], dict(unit=0, h=h)))
        trace += [(EP0, dict(unit=0, h=h)), (US1, dict(unit=1, h=h))]
        for j in range(16): trace.append((IT[j], dict(unit=1, h=h)))
        trace.append((EP1, dict(unit=1, h=h)))
        issued = []
        for blk, c in trace:
            for it in blk.items:
                if it[0] == 'vm': issued.append(it[2](c))
                elif it[0] == 'vw':
                    idx = -1
                    for t in it[2](c):
                        cand = [n for n, x in enumerate(issued) if x[:len(t)] == t]
                        if not cand:
                            if t[0] in 'KV' and t[1] >= 32: continue
                            if o.noq and t[0] == 'Q': continue
                            raise Exception(f"{blk.name} {c}: need {t} never issued")
                        idx = max(idx, cand[-1])
                    n = len(issued) - 1 - idx if idx >= 0 else 63
                    Nsite[it[1]] = min(Nsite.get(it[1], 63), n)
        for kind in 'KV':
            for t in range(32):
                cnt = sum(1 for x in issued if x[0] == kind and x[1] == t)
                assert cnt == 2, (h, kind, t, cnt)
    o.Nsite = Nsite
    def render(blk):
        out = []
        for it in blk.items:
            if it[0] == 'i':
                t = it[1]; out.append(t if t.endswith(":") else "    " + t)
            elif it[0] == 'vm':
                if not (o.nodma and blk.name.startswith("I")): out.append("    " + it[1])
            else:
                nn = Nsite[it[1]]
                out.append(f"    s_waitcnt vmcnt({nn})")
                if it[3] == "bar" and not (o.nobar and blk.name != "EN"): out.append("    s_barrier")
        return out
    NPER = 5
    def stamp(k):
        if not o.stamps: return []
        return [f"    s_memtime s[{S_ST}:{S_ST+1}]", f"    s_memrealtime s[{S_ST+2}:{S_ST+3}]", "    s_waitcnt lgkmcnt(0)",
                f"    v_mov_b32 v60, s{S_ST}", f"    v_mov_b32 v61, s{S_ST+2}", f"    s_mul_i32 s{S_ST+4}, s{S_UNIT}, {NPER*8}",
                f"    s_add_u32 s{S_ST+4}, s{S_ST+4}, s{S_ST+5}", f"    v_mov_b32 v62, s{S_ST+4}", f"    ds_write_b64 v62, v[60:61] offset:{k*8}"]
    if o.stamps:
        E.items.insert(len(E.items) - 1, ('i', "s_nop 0"))
    en = render(E)
    if o.stamps:
        k = next(n for n, l in enumerate(en) if "s_waitcnt lgkmcnt(0)" in l)
        en[k+1:k+1] = [f"    s_lshl_b32 s{S_ST+5}, s{S_W}, 8", f"    s_add_u32 s{S_ST+5}, s{S_ST+5}, 131072"]
        k = next(n for n, l in enumerate(en) if "v_pk_mul_f32" in l)
        en[k:k] = stamp(0)
    A += en
    if o.nodma: A.append("    s_waitcnt vmcnt(0)\n    s_barrier")
    A.append("    .p2align 6")
    A.append("L_UNIT:")
    A += stamp(1)
    for j in range(15): A += render(IT[j])
    A += stamp(2)
    A += render(IT[15])
    A.append("    s_nop 7")
    A += stamp(3)
    A.append(f"    s_cmp_lg_u32 s{S_UNIT}, 0")
    A.append("    s_cbranch_scc1 L_FINAL")
    A += render(EP0)
    A += stamp(4)
    A.append(f"    s_mov_b32 s{S_UNIT}, 1")
    A.append(f"    s_mov_b32 s{S_OP+2}, s{S_U0SZ}")
    A.append(f"    s_mov_b32 s{S_Q+2}, 0")
    A += stamp(0)
    A += render(US1)
    A.append("    s_branch L_UNIT")
    A.append("L_FINAL:")
    A += render(EP1)
    A += stamp(4)
    if o.stamps:
        A.append("    s_waitcnt vmcnt(0)")
        A.append("    s_memrealtime s[92:93]")
        A.append("    s_waitcnt lgkmcnt(0)")
        A.append("    s_mov_b32 s96, s88\n    s_and_b32 s97, s89, 0xffff\n    s_mov_b32 s98, 268435456\n    s_mov_b32 s99, 0x20000")
        A.append("    v_mov_b32 v32, s90\n    v_mov_b32 v33, s92\n    s_lshl_b32 s46, s2, 3\n    v_mov_b32 v34, s46")
        A.append("    v_cmp_eq_u32 vcc, 0, v0\n    s_and_saveexec_b64 s[46:47], vcc")
        A.append("    buffer_store_dwordx2 v[32:33], v34, s[96:99], 0 offen")
        A.append("    s_mov_b64 exec, -1")
        A.append("    v_and_b32 v35, 63, v0\n    v_lshlrev_b32 v36, 3, v35")
        A.append(f"    v_add_u32 v36, s{S_ST+5}, v36\n    ds_read_b64 v[38:39], v36")
        A.append(f"    s_lshl_b32 s46, s2, 2\n    s_add_u32 s46, s46, s{S_W}\n    s_mul_i32 s46, s46, {2*NPER*8}\n    s_add_u32 s46, s46, 65536")
        A.append("    v_lshlrev_b32 v37, 3, v35\n    v_add_u32 v37, s46, v37")
        A.append(f"    v_cmp_gt_u32 vcc, {2*NPER}, v35\n    s_and_saveexec_b64 s[46:47], vcc\n    s_waitcnt lgkmcnt(0)")
        A.append("    buffer_store_dwordx2 v[38:39], v37, s[96:99], 0 offen\n    s_waitcnt vmcnt(0)")
    A.append("L_END:")
    A.append("    s_endpgm")
    A.append("L_CODE_END:")
    A.append(f""".section .rodata,"a"
.p2align 6
.amdhsa_kernel {o.name}
  .amdhsa_next_free_vgpr 512
  .amdhsa_next_free_sgpr 102
  .amdhsa_accum_offset 256
  .amdhsa_group_segment_fixed_size 0
  .amdhsa_kernarg_size 48
  .amdhsa_user_sgpr_count 2
  .amdhsa_user_sgpr_kernarg_segment_ptr 1
  .amdhsa_system_sgpr_workgroup_id_x 1
  .amdhsa_float_denorm_mode_32 3
.end_amdhsa_kernel
""")
    return "\n".join(A)

def main(argv):
    ap = argparse.ArgumentParser()
    ap.add_argument("-o", default="standalone__gqa_softmax__near_ridge.s")
    ap.add_argument("--set", action="append", default=[])
    a = ap.parse_args(argv)
    o = Opt()
    for kv in a.set:
        k, v = kv.split("=", 1)
        cur = getattr(o, k)
        if isinstance(cur, bool): v = v in ("1", "True", "true")
        elif isinstance(cur, int): v = int(v)
        else: v = v.replace("_", " ") if k.startswith("nt") else v
        setattr(o, k, v)
    txt = gen(o)
    open(a.o, "w").write(txt)
    print("waits:", {k[0] + ":" + str(k[1]): v for k, v in o.Nsite.items()}, file=sys.stderr)
if __name__ == "__main__": main(sys.argv[1:])
```

```python
import sys, math, struct, argparse

NAME = "standalone__gqa_softmax__near_ridge_kernel"
def f2u(x): return struct.unpack("<I", struct.pack("<f", x))[0]

class Opt:
    name = NAME
    nt_kv = " nt"; nt_q = " nt"; nt_o = " sc0 sc1"; nt_of = " sc0 sc1"
    stamps = False
    code_prefetch = True
    nobar = False
    slow = True
    lo_exp = -30; hi_exp = 42

V_AK = 4; V_AV = 8; V_KD = 16; V_VD = 18; V_QD = 20
V_OT = 24
V_OSR = 2
V_L4 = 28
V_ONE = 44
V_T = 48
V_S = 64
V_OACC = 128
A_Q = 0; A_K = 64; A_V = 96

S_K = 8; S_V = 12; S_Q = 16; S_O = 20; S_OP = 24
S_KOFF = 28; S_VOFF = 29; S_KPAR = 30; S_VB = 31
S_W = 32; S_TRIP = 33; S_C = 34
S_H = 36; S_BAD = 37; S_U1OFF = 38; S_U1SZ = 39; S_U0OFF = 40; S_U0SZ = 41
S_QM = 42; S_QOFF = 43; S_WB = 44; S_STG = 45
S_T = 46
S_PQ = 56; S_PK = 58; S_PV = 60; S_PO = 62
S_C4K = 64
S_ST = 76
LDS_V = 65536; LDS_STG = 98304
DK = 6; DV = 3

def Sreg(buf, qt, kt): return V_S + buf*32 + qt*8 + kt*4
def vr(a, n=4): return f"v[{a}:{a+n-1}]"
def ar(a, n=4): return f"a[{a}:{a+n-1}]"
def sr(a, n=4): return f"s[{a}:{a+n-1}]"

class Block:
    def __init__(self, name):
        self.name = name; self.items = []; self.ds_q = []
    def i(self, text): self.items.append(('i', text))
    def label(self, l): self.items.append(('i', l + ":"))
    def vm(self, text, tagfn): self.items.append(('vm', text, tagfn))
    def vw(self, needfn, extra=""): self.items.append(('vw', (self.name, len(self.items)), needfn, extra))
    def ds(self, text, tag): self.i(text); self.ds_q.append(tag)
    def ds_need(self, tags):
        idx = -1
        for t in tags:
            if t in self.ds_q: idx = max(idx, len(self.ds_q) - 1 - self.ds_q[::-1].index(t))
        if idx < 0: return
        n = min(len(self.ds_q) - 1 - idx, 15)
        self.i(f"s_waitcnt lgkmcnt({n})")
        self.ds_q = self.ds_q[len(self.ds_q) - n:] if n > 0 else []

def mfma(d, a, b, c): return f"v_mfma_f32_16x16x32_bf16 {d}, {a}, {b}, {c}"
def k_read(blk, off, kt, s):
    blk.ds(f"ds_read_b128 {ar(A_K + kt*16 + s*4)}, v{V_AK+s} offset:{off*8192 + kt*4096}", ('K', kt, s))
def v_read(blk, slot, T, hh):
    blk.ds(f"ds_read_b64_tr_b16 {ar(A_V + T*4 + hh*2, 2)}, v{V_AV+T} offset:{slot*8192 + hh*4096}", ('V', T, hh))
KALL = [('K', kt, s) for kt in range(2) for s in range(4)]

def qk_mfmas(buf, qts=range(4)):
    out = []
    for qt in qts:
        for kt in range(2):
            for s in range(4):
                d = vr(Sreg(buf, qt, kt))
                out.append((mfma(d, ar(A_K + kt*16 + s*4), ar(A_Q + qt*16 + s*4), "0" if s == 0 else d), [('K', kt, s)]))
    return out
def pv_mfmas(buf, zero):
    out = []
    for qt in range(4):
        dl = vr(V_L4 + qt*4)
        out.append((mfma(dl, vr(V_ONE), vr(Sreg(buf, qt, 0)), "0" if zero else dl), []))
        for T in range(8):
            d = vr(V_OACC + qt*32 + T*4)
            out.append((mfma(d, ar(A_V + T*4), vr(Sreg(buf, qt, 0)), "0" if zero else d), [('V', T, 0), ('V', T, 1)]))
    return out
def sm_flat(buf, qt):
    base = Sreg(buf, qt, 0)
    e = lambda i: f"v_exp_f32 v{base+i}, v{base+i}"
    c = lambda k: f"v_cvt_pk_bf16_f32 v{base+k}, v{base+2*k}, v{base+2*k+1}"
    return [e(0), e(1), e(2), c(0), e(3), e(4), c(1), e(5), e(6), c(2), e(7), "s_nop 0", c(3)]

def gj(c): return c['unit']*16 + c['j']

def kv_dmas(o, kind, p):
    ops = []
    if kind == 'first':   mk = [f"s_add_u32 m0, s{S_WB}, {(DK % 8)*8192}"]
    elif kind == 'drain': mk = [f"s_add_u32 m0, s{S_WB}, {((15 + DK) % 8)*8192}"]
    else:
        x = ((p if p else 4) + DK) % 8
        mk = [f"s_xor_b32 m0, s{S_KPAR}, {x*8192}"]
    mv = [f"s_add_u32 m0, s{S_VB}, {((p + DV) % 4)*8192}"]
    ops.append((mv, f"buffer_load_dwordx4 v{V_VD}, {sr(S_V)}, s{S_VOFF} offen{o.nt_kv} lds", lambda c: ('V', gj(c)+DV, 0), []))
    ops.append(([], f"buffer_load_dwordx4 v{V_VD+1}, {sr(S_V)}, s{S_VOFF} offen offset:1024{o.nt_kv} lds", lambda c: ('V', gj(c)+DV, 1), [f"s_add_u32 s{S_VOFF}, s{S_VOFF}, 8192"]))
    ops.append((mk, f"buffer_load_dwordx4 v{V_KD}, {sr(S_K)}, s{S_KOFF} offen{o.nt_kv} lds", lambda c: ('K', gj(c)+DK, 0), []))
    ops.append(([], f"buffer_load_dwordx4 v{V_KD+1}, {sr(S_K)}, s{S_KOFF} offen offset:1024{o.nt_kv} lds", lambda c: ('K', gj(c)+DK, 1), [f"s_add_u32 s{S_KOFF}, s{S_KOFF}, 8192"]))
    return ops

def qprime_dma(o, n4, tagfn, pre_extra=[], post=[]):
    return (pre_extra + [f"s_add_u32 m0, s{S_QM}, {n4*1024}"],
            f"buffer_load_dwordx4 v{V_QD+n4}, {sr(S_Q)}, s{S_QOFF} offen{o.nt_q} lds", tagfn, post)

def need_bj(c):
    g = gj(c)
    return [('K', g+2, 0), ('K', g+2, 1), ('V', g, 0), ('V', g, 1)]

def emit_iter(o, unit, kind, p):
    b = Block(f"U{unit}{kind}{p}")
    cb = p % 2; nb = 1 - cb
    mf = qk_mfmas(nb) + pv_mfmas(cb, kind == 'first')
    NG = len(mf); assert NG == 68
    valu = [[] for _ in range(NG)]; mem = [[] for _ in range(NG)]; pre = [[] for _ in range(NG)]
    for q, (buf, qt) in enumerate(((cb, 3), (nb, 0), (nb, 1), (nb, 2))):
        base = Sreg(buf, qt, 0); g0 = 17*q
        for e in range(8): valu[g0 + 2*e].append(f"v_exp_f32 v{base+e}, v{base+e}")
        for k in range(4): valu[g0 + 4*k + 3].append(f"v_cvt_pk_bf16_f32 v{base+k}, v{base+2*k}, v{base+2*k+1}")
    vreads = [(T, hh) for T in range(8) for hh in range(2)]
    for n, (T, hh) in enumerate(vreads): mem[17*(n // 8) + 2*(n % 8) + 1].append(('v', T, hh))
    koff = 2 if kind == 'first' else {1: 3, 2: 0, 3: 1, 0: 2}[p]
    for n, (kt, s) in enumerate([(kt, s) for kt in range(2) for s in range(4)]):
        mem[17*(2 + n // 4) + 4*(n % 4) + 1].append(('k', kt, s))
    for d, g in zip(kv_dmas(o, kind, p), (16, 33, 50, 67)):
        mem[g].append(('d', d)); pre[g-1] += d[0]
    if kind == 'body' and p == 2:
        for s in range(4): valu[4*s + 1].append(f"v_xor_b32 v{V_AK+s}, 0x8000, v{V_AK+s}")
    if unit == 0:
        if kind == 'first':
            d0 = qprime_dma(o, 0, lambda c: ('Q', 1, 0)); d1 = qprime_dma(o, 1, lambda c: ('Q', 1, 1))
            mem[39].append(('d', d0)); pre[38] += d0[0]
            mem[45].append(('d', d1)); pre[44] += d1[0]
        else:
            n4 = (p + 1) % 4
            ex = [f"s_add_u32 s{S_QM}, s{S_QM}, 4096", f"s_add_u32 s{S_QOFF}, s{S_QOFF}, 4096"] if n4 == 0 else []
            d = qprime_dma(o, n4, lambda c: ('Q', 1, c['j']+1), ex)
            mem[41].append(('d', d)); pre[40] += d[0]
    else:
        n4 = p
        if kind == 'body' and p == 0:
            valu[5].append(f"v_add_u32 v{V_OSR}, 4096, v{V_OSR}")
            pre[8].append(f"s_add_u32 s{S_QOFF}, s{S_QOFF}, 4096")
        mem[37].append(('o', n4))
        mem[58].append(('s', n4))
    b.ds_q = list(KALL)
    b.ds_need(mf[0][1])
    for g in range(NG):
        b.i(mf[g][0])
        if g == 0: b.vw(need_bj, "bar")
        if g + 1 < NG: b.ds_need(mf[g+1][1])
        if any(m[0] == 's' for m in mem[g]): b.ds_need([('O',)])
        for x in pre[g]: b.i(x)
        for m in mem[g]:
            if m[0] == 'v': v_read(b, p % 4, m[1], m[2])
            elif m[0] == 'k': k_read(b, koff, m[1], m[2])
            elif m[0] == 'o': b.ds(f"ds_read_b128 {vr(V_OT)}, v{V_OSR} offset:{m[1]*1024}", ('O',))
            elif m[0] == 's':
                b.vm(f"buffer_store_dwordx4 {vr(V_OT)}, v{V_QD+m[1]}, {sr(S_OP)}, s{S_QOFF} offen{o.nt_o}", lambda c: ('O', 0, c['j']))
            else:
                b.vm(m[1][1], m[1][2])
                for x in m[1][3]: b.i(x)
        for x in valu[g]: b.i(x)
    assert b.ds_q == KALL[-len(b.ds_q):], b.ds_q
    return b

def emit_drain(o, unit):
    b = Block(f"U{unit}drain")
    p = 3; cb = 1
    pv = pv_mfmas(cb, False)
    dmas = kv_dmas(o, 'drain', p) if unit == 0 else []
    b.vw(need_bj, "bar")
    for T in range(8):
        for hh in range(2): v_read(b, p, T, hh)
    if unit == 1:
        b.ds(f"ds_read_b128 {vr(V_OT)}, v{V_OSR} offset:{3*1024}", ('O',))
    sm3 = sm_flat(cb, 3)
    for x in sm3[:4]: b.i(x)
    sm3 = sm3[4:]
    di = 0
    for n, (txt, deps) in enumerate(pv):
        b.ds_need(deps)
        b.i(txt)
        if n % 4 == 0 and di < len(dmas):
            for x in dmas[di][0]: b.i(x)
        if n % 4 == 1 and di < len(dmas):
            pre_s, t, tag, post = dmas[di]; di += 1
            b.vm(t, tag)
            for x in post: b.i(x)
        if n == 12 and unit == 1:
            b.ds_need([('O',)])
            b.vm(f"buffer_store_dwordx4 {vr(V_OT)}, v{V_QD+3}, {sr(S_OP)}, s{S_QOFF} offen{o.nt_o}", lambda c: ('O', 0, 15))
        k = 0
        while sm3 and k < 2:
            x = sm3.pop(0); b.i(x); k += 2 if 'exp' in x else 1
    assert di == len(dmas) and not sm3
    return b

def prescale(b, qt, wait=None):
    t = V_T
    for g in range(4):
        b.ds(f"ds_read_b128 {vr(Sreg(1, g, 0))}, v{V_QA+g} offset:{qt*4096}", ('QR', qt, g))
    for g in range(4):
        r = Sreg(1, g, 0)
        b.ds_need([('QR', qt, g)])
        for x in range(4):
            b.i(f"v_lshlrev_b32 v{t+2*x}, 16, v{r+x}")
            b.i(f"v_and_b32 v{t+2*x+1}, 0xffff0000, v{r+x}")
        for x in range(4): b.i(f"v_pk_mul_f32 {vr(t+2*x,2)}, {vr(t+2*x,2)}, {sr(S_C,2)}")
        for x in range(4): b.i(f"v_cvt_pk_bf16_f32 v{r+x}, v{t+2*x}, v{t+2*x+1}")
        for x in range(4): b.i(f"v_accvgpr_write_b32 a{A_Q+qt*16+g*4+x}, v{r+x}")
V_QA = 56
def q_addr(b):
    for s in range(4): b.i(f"v_add_u32 v{V_QA+s}, s{S_STG}, v{V_AK+s}")

def emit_ep(o, final):
    b = Block("EP1" if final else "EP0")
    t = Sreg(1, 0, 0)
    L = lambda qt: V_L4 + 4*qt
    for qt in range(4): b.i(f"v_rcp_f32 v{t+2*qt}, v{L(qt)}")
    b.i(f"v_and_b32 v{t+16}, 15, v0"); b.i(f"v_bfe_u32 v{t+17}, v0, 5, 1"); b.i(f"v_bfe_u32 v{t+18}, v0, 4, 1")
    b.i(f"v_xor_b32 v{t+17}, v{t+17}, v{t+16}")
    b.i(f"v_lshlrev_b32 v{t+17}, 4, v{t+17}")
    b.i(f"v_lshl_add_u32 v{t+17}, v{t+18}, 3, v{t+17}")
    b.i(f"v_lshl_add_u32 v{t+17}, v{t+16}, 8, v{t+17}")
    for T in range(8): b.i(f"v_xor_b32 v{t+8+T}, {32*T}, v{t+17}")
    for T in range(8): b.i(f"v_add_u32 v{t+8+T}, s{S_STG}, v{t+8+T}")
    b.i(f"v_min3_f32 v{t+16}, v{L(0)}, v{L(1)}, v{L(2)}")
    b.i(f"v_add_f32 v{t+17}, v{L(0)}, v{L(1)}")
    b.i(f"v_add_f32 v{t+18}, v{L(2)}, v{L(3)}")
    b.i(f"v_min_f32 v{t+16}, v{t+16}, v{L(3)}")
    b.i(f"v_add_f32 v{t+17}, v{t+17}, v{t+18}")
    b.i(f"v_cmp_le_f32 vcc, {hex(f2u(2.0**o.lo_exp))}, v{t+16}")
    b.i(f"s_mov_b64 {sr(S_T,2)}, vcc")
    b.i(f"v_cmp_ge_f32 vcc, {hex(f2u(2.0**o.hi_exp))}, v{t+17}")
    b.i(f"s_and_b64 {sr(S_T,2)}, {sr(S_T,2)}, vcc")
    b.i(f"s_cmp_eq_u64 {sr(S_T,2)}, -1")
    b.i(f"s_cselect_b32 s{S_T}, 0, {2 if final else 1}")
    b.i(f"s_or_b32 s{S_BAD}, s{S_BAD}, s{S_T}")
    def fin(q2):
        xx = V_OACC + q2*32
        for n4 in range(4):
            b.ds_need([('R', q2, n4)])
            b.vm(f"buffer_store_dwordx4 {vr(xx+8+4*n4)}, v{V_QD+n4}, {sr(S_O)}, s{S_C4K+q2} offen{o.nt_of}",
                 (lambda a_, b_: (lambda c: ('O', 1, a_*4+b_)))(q2, n4))
    if final:
        b.i(f"v_subrev_u32 v{V_OSR}, {3*4096}, v{V_OSR}")
    for qt in range(4):
        for T in range(8):
            x = V_OACC + qt*32 + T*4
            b.i(f"v_pk_mul_f32 {vr(x,2)}, {vr(x,2)}, {vr(t+2*qt,2)} op_sel_hi:[1,0]")
            b.i(f"v_pk_mul_f32 {vr(x+2,2)}, {vr(x+2,2)}, {vr(t+2*qt,2)} op_sel_hi:[1,0]")
            b.i(f"v_cvt_pk_bf16_f32 v{x}, v{x}, v{x+1}")
            b.i(f"v_cvt_pk_bf16_f32 v{x+1}, v{x+2}, v{x+3}")
            b.ds(f"ds_write_b64 v{t+8+T}, {vr(x,2)} offset:{qt*4096}", ('W', qt, T))
        if final:
            x = V_OACC + qt*32
            b.ds_need([('W', qt, 7)])
            for n4 in range(4): b.ds(f"ds_read_b128 {vr(x+8+4*n4)}, v{V_OSR} offset:{qt*4096 + n4*1024}", ('R', qt, n4))
            if qt > 0: fin(qt - 1)
    if final: fin(3)
    return b

def gen(o):
    c_scale = math.log2(math.e) / math.sqrt(128.0)
    A = []
    A.append(f"""; GQA softmax attention forward: hand-scheduled 16x16x32 bf16 MFMA kernel (emitted by my generator script gen/gen3.py)
; @launch grid=(256,1,1) block=(256,1,1) lds=163840
.amdgcn_target "amdgcn-amd-amdhsa--gfx950"
.text
.globl {o.name}
.p2align 8
.type {o.name},@function
{o.name}:""")
    E = Block("EN")
    E.i("s_cmp_ge_u32 s2, 256")
    E.i("s_cbranch_scc1 L_END")
    E.i(f"s_load_dwordx4 s[{S_PQ}:{S_PQ+3}], s[0:1], 0")
    E.i(f"s_load_dwordx4 s[{S_PV}:{S_PV+3}], s[0:1], 16")
    if o.stamps:
        E.i("s_load_dwordx2 s[88:89], s[0:1], 40")
        E.i("s_memrealtime s[90:91]")
    if o.code_prefetch:
        E.i("s_getpc_b64 s[52:53]")
        E.label("L_PC0")
        E.i("v_lshlrev_b32 v1, 6, v0")
        E.i("v_add_u32 v2, 16384, v1")
        E.i("v_min_u32 v1, L_CODE_END-L_PC0-4, v1")
        E.i("v_min_u32 v2, L_CODE_END-L_PC0-4, v2")
        E.vm("global_load_dword v63, v1, s[52:53]", lambda c: ('C',))
        E.vm("global_load_dword v63, v2, s[52:53]", lambda c: ('C',))
    E.i("v_lshrrev_b32 v1, 6, v0")
    E.i("v_and_b32 v62, 15, v0")
    E.i(f"v_readfirstlane_b32 s{S_W}, v1")
    E.i("v_bfe_u32 v3, v0, 4, 2")
    m, G = "v62", "v3"
    E.i(f"v_lshl_add_u32 v33, v1, 3, {G}")
    for n in range(2):
        E.i(f"v_add_u32 v34, {4*n}, v33")
        E.i("v_and_b32 v35, 15, v34")
        E.i(f"v_xor_b32 v35, v35, {m}")
        E.i("v_lshlrev_b32 v35, 4, v35")
        E.i("v_lshl_add_u32 v35, v34, 8, v35")
        E.i(f"v_subrev_u32 v{V_KD+n}, {1024*n}, v35")
    E.i(f"v_lshl_add_u32 v36, v1, 6, {G}")
    for n in range(4):
        E.i(f"v_add_u32 v34, {4*n}, {G}")
        E.i(f"v_xor_b32 v35, v34, {m}")
        E.i("v_lshlrev_b32 v35, 4, v35")
        E.i(f"v_add_u32 v34, {4*n}, v36")
        E.i(f"v_lshl_add_u32 v{V_QD+n}, v34, 8, v35")
    E.i("s_and_b32 s54, s2, 7")
    E.i("s_lshr_b32 s55, s2, 3")
    E.i(f"s_and_b32 s{S_H}, s55, 1")
    E.i("s_and_b32 s55, s55, 30")
    E.i("s_lshl_b32 s54, s54, 5")
    E.i("s_add_u32 s54, s54, s55")
    E.i("s_lshl_b32 s46, s54, 17")
    E.i("s_add_u32 s47, s46, 0x40000")
    E.i("s_mul_i32 s54, s54, 126976")
    E.i(f"s_lshl_b32 s55, s{S_H}, 16")
    E.i(f"s_add_u32 s{S_U0OFF}, s54, s55")
    E.i(f"s_add_u32 s{S_U1OFF}, s54, 126976+65536")
    E.i(f"s_sub_u32 s{S_U1OFF}, s{S_U1OFF}, s55")
    E.i(f"s_lshl_b32 s55, s{S_H}, 12")
    E.i(f"s_sub_u32 s{S_U0SZ}, 65536, s55")
    E.i(f"s_add_u32 s{S_U1SZ}, s55, 61440")
    E.i(f"s_lshl_b32 s{S_WB}, s{S_W}, 11")
    E.i(f"s_lshl_b32 s{S_STG}, s{S_W}, 14")
    E.i(f"s_add_u32 s{S_STG}, s{S_STG}, {LDS_STG}")
    E.i("s_waitcnt lgkmcnt(0)")
    E.i(f"s_mov_b32 s{S_K}, s{S_PK}"); E.i(f"s_and_b32 s{S_K+1}, s{S_PK+1}, 0xffff"); E.i(f"s_mov_b32 s{S_K+2}, s47"); E.i(f"s_mov_b32 s{S_K+3}, 0x20000")
    E.i(f"s_add_u32 s{S_Q}, s{S_PQ}, s{S_U0OFF}"); E.i(f"s_addc_u32 s{S_Q+1}, s{S_PQ+1}, 0"); E.i(f"s_and_b32 s{S_Q+1}, s{S_Q+1}, 0xffff")
    E.i(f"s_mov_b32 s{S_Q+2}, s{S_U0SZ}"); E.i(f"s_mov_b32 s{S_Q+3}, 0x20000")
    def dma(kind, t0):
        base = 0 if kind == 'K' else LDS_V
        vd = V_KD if kind == 'K' else V_VD
        srd = S_K if kind == 'K' else S_V
        slot = t0 % 8 if kind == 'K' else t0 % 4
        E.i(f"s_add_u32 m0, s{S_WB}, {base + slot*8192}")
        E.i(f"s_add_u32 s53, s46, {t0*8192}")
        for n in range(2):
            E.vm(f"buffer_load_dwordx4 v{vd+n}, {sr(srd)}, s53 offen" + (" offset:1024" if n else "") + f"{o.nt_kv} lds",
                 (lambda n_: (lambda c: (kind, t0, n_)))(n))
    def qload(qt):
        E.i(f"s_mov_b32 s53, {qt*4096}")
        for n in range(4):
            E.i(f"s_add_u32 m0, s{S_STG}, {qt*4096 + n*1024}")
            E.i("s_nop 0")
            E.vm(f"buffer_load_dwordx4 v{V_QD+n}, {sr(S_Q)}, s53 offen{o.nt_q} lds", (lambda n_: (lambda c: ('Q', 0, qt*4 + n_)))(n))
    dma('K', 0); dma('K', 1)
    qload(0); qload(1)
    E.i(f"s_mov_b32 s{S_V}, s{S_PV}"); E.i(f"s_and_b32 s{S_V+1}, s{S_PV+1}, 0xffff"); E.i(f"s_mov_b32 s{S_V+2}, s47"); E.i(f"s_mov_b32 s{S_V+3}, 0x20000")
    for s in range(4):
        E.i(f"v_or_b32 v32, {4*s}, {G}")
        E.i(f"v_xor_b32 v32, v32, {m}")
        E.i("v_lshlrev_b32 v32, 4, v32")
        E.i(f"v_lshl_add_u32 v{V_AK+s}, {m}, 8, v32")
    E.i(f"v_lshrrev_b32 v33, 2, {m}")
    E.i(f"v_lshl_add_u32 v34, {G}, 2, v33")
    E.i("v_and_b32 v35, 7, v34")
    E.i(f"v_and_b32 v38, 3, {m}")
    E.i("v_lshlrev_b32 v38, 3, v38")
    E.i("v_lshl_add_u32 v38, v34, 8, v38")
    E.i(f"v_add_u32 v38, {LDS_V}, v38")
    for T in range(8):
        E.i(f"v_xor_b32 v32, {T}, v35")
        E.i(f"v_lshl_add_u32 v{V_AV+T}, v32, 5, v38")
    E.i(f"v_lshl_add_u32 v33, v1, 3, {G}")
    for n in range(2):
        E.i(f"v_add_u32 v34, {4*n}, v33")
        E.i("v_and_b32 v35, 7, v34")
        E.i("v_lshlrev_b32 v35, 1, v35")
        E.i(f"v_xor_b32 v35, v35, {m}")
        E.i("v_lshlrev_b32 v35, 4, v35")
        E.i("v_lshl_add_u32 v35, v34, 8, v35")
        E.i(f"v_subrev_u32 v{V_VD+n}, {1024*n}, v35")
    E.i(f"v_and_b32 v32, 3, {m}")
    E.i("v_mov_b32 v33, 0x3f803f80")
    E.i("v_cmp_eq_u32 vcc, 0, v32")
    E.i("v_and_b32 v34, 63, v0")
    E.i("v_lshlrev_b32 v34, 4, v34")
    E.i("v_cndmask_b32 v33, 0, v33, vcc")
    for r in range(4): E.i(f"v_mov_b32 v{V_ONE+r}, v33")
    E.i(f"v_add_u32 v{V_OSR}, s{S_STG}, v34")
    E.i(f"s_mov_b32 s{S_C}, {hex(f2u(c_scale))}"); E.i(f"s_mov_b32 s{S_C+1}, {hex(f2u(c_scale))}")
    E.i(f"s_mov_b32 s{S_BAD}, 0")
    E.i(f"s_add_u32 s{S_KOFF}, s46, {DK*8192}"); E.i(f"s_add_u32 s{S_VOFF}, s46, {DV*8192}")
    E.i(f"s_add_u32 s{S_VB}, s{S_WB}, {LDS_V}")
    for q2 in range(4): E.i(f"s_mov_b32 s{S_C4K+q2}, {q2*4096}")
    E.i(f"s_add_u32 s{S_O}, s{S_PO}, s{S_U1OFF}"); E.i(f"s_addc_u32 s{S_O+1}, s{S_PO+1}, 0"); E.i(f"s_and_b32 s{S_O+1}, s{S_O+1}, 0xffff")
    E.i(f"s_mov_b32 s{S_O+2}, s{S_U1SZ}"); E.i(f"s_mov_b32 s{S_O+3}, 0x20000")
    E.i(f"s_add_u32 s{S_OP}, s{S_PO}, s{S_U0OFF}"); E.i(f"s_addc_u32 s{S_OP+1}, s{S_PO+1}, 0"); E.i(f"s_and_b32 s{S_OP+1}, s{S_OP+1}, 0xffff")
    E.i(f"s_mov_b32 s{S_OP+2}, s{S_U0SZ}"); E.i(f"s_mov_b32 s{S_OP+3}, 0x20000")
    q_addr(E)
    qload(2)
    rest = []
    for t in range(DV): rest += [('V', t), ('K', t+2)]
    for t in range(DV + 2, DK): rest.append(('K', t))
    Qneed = lambda u, qt: (lambda c: [('Q', u, qt*4 + n) for n in range(4)])
    E.vw(Qneed(0, 0))
    prescale(E, 0)
    qload(3)
    E.vw(lambda c: [('K', 0, 0), ('K', 0, 1), ('K', 1, 0), ('K', 1, 1)], "bar")
    for kt in range(2):
        for s in range(4): k_read(E, 0, kt, s)
    E.vw(Qneed(0, 1))
    prescale(E, 1)
    dma(*rest.pop(0)); dma(*rest.pop(0))
    E.ds_need(KALL)
    for (txt, deps) in qk_mfmas(0, [0, 1]): E.i(txt)
    E.vw(Qneed(0, 2))
    prescale(E, 2)
    dma(*rest.pop(0)); dma(*rest.pop(0))
    E.i("s_nop 0")
    for (txt, deps) in qk_mfmas(0, [2]): E.i(txt)
    for x in sm_flat(0, 0): E.i(x)
    E.vw(Qneed(0, 3))
    prescale(E, 3)
    E.i(f"s_add_u32 s{S_Q}, s{S_PQ}, s{S_U1OFF}"); E.i(f"s_addc_u32 s{S_Q+1}, s{S_PQ+1}, 0"); E.i(f"s_and_b32 s{S_Q+1}, s{S_Q+1}, 0xffff")
    E.i(f"s_mov_b32 s{S_Q+2}, s{S_U1SZ}")
    E.i(f"s_mov_b32 s{S_QM}, s{S_STG}"); E.i(f"s_mov_b32 s{S_QOFF}, 0")
    dma(*rest.pop(0)); dma(*rest.pop(0))
    for (txt, deps) in qk_mfmas(0, [3]): E.i(txt)
    for kt in range(2):
        for s in range(4): k_read(E, 1, kt, s)
    for x in sm_flat(0, 1): E.i(x)
    while rest: dma(*rest.pop(0))
    for x in sm_flat(0, 2): E.i(x)

    U = []
    for u in range(2):
        U.append(dict(first=emit_iter(o, u, 'first', 0), body={p: emit_iter(o, u, 'body', p) for p in (1, 2, 3, 0)}, drain=emit_drain(o, u)))
    US1 = Block("US1")
    q_addr(US1)
    for qt in range(4):
        US1.vw(Qneed(1, qt))
        prescale(US1, qt)
    US1.i("s_nop 0")
    for (txt, deps) in qk_mfmas(0): US1.i(txt)
    EP0 = emit_ep(o, False); EP1 = emit_ep(o, True)
    US2 = Block("US2")
    for kt in range(2):
        for s in range(4): k_read(US2, 1, kt, s)
    for qt in range(3):
        for x in sm_flat(0, qt): US2.i(x)

    Nsite = {}
    trace = [(E, dict(unit=0, j=-1))]
    for u in range(2):
        trace.append((U[u]['first'], dict(unit=u, j=0)))
        for j in range(1, 15): trace.append((U[u]['body'][j % 4], dict(unit=u, j=j)))
        trace.append((U[u]['drain'], dict(unit=u, j=15)))
        if u == 0: trace += [(US1, dict(unit=1, j=-1)), (EP0, dict(unit=0, j=15)), (US2, dict(unit=1, j=-1))]
    trace.append((EP1, dict(unit=1, j=15)))
    issued = []
    for blk, c in trace:
        for it in blk.items:
            if it[0] == 'vm': issued.append(it[2](c))
            elif it[0] == 'vw':
                idx = -1
                for t in it[2](c):
                    cand = [n for n, x in enumerate(issued) if x[:len(t)] == t]
                    if not cand:
                        if t[0] in 'KV' and t[1] >= 32: continue
                        raise Exception(f"{blk.name} {c}: need {t} never issued")
                    idx = max(idx, cand[-1])
                n = len(issued) - 1 - idx if idx >= 0 else 63
                Nsite[it[1]] = min(Nsite.get(it[1], 63), n)
    for kind in 'KV':
        for t in range(32):
            cnt = sum(1 for x in issued if x[0] == kind and x[1] == t)
            assert cnt == 2, (kind, t, cnt)
    for u in range(2):
        assert sorted(x[2] for x in issued if x[0] == 'Q' and x[1] == u) == list(range(16))
        assert sorted(x[2] for x in issued if x[0] == 'O' and x[1] == u) == list(range(16))
    o.Nsite = Nsite
    def render(blk):
        out = []
        for it in blk.items:
            if it[0] == 'i':
                t = it[1]; out.append(t if t.endswith(":") else "    " + t)
            elif it[0] == 'vm': out.append("    " + it[1])
            else:
                out.append(f"    s_waitcnt vmcnt({Nsite[it[1]]})")
                if it[3] == "bar" and not (o.nobar and blk.name != "EN"): out.append("    s_barrier")
        return out
    NST = 10
    def stamp(k):
        if not o.stamps: return []
        return [f"    s_memtime s[{S_ST}:{S_ST+1}]", f"    s_memrealtime s[{S_ST+2}:{S_ST+3}]", "    s_waitcnt lgkmcnt(0)",
                f"    v_writelane_b32 v25, s{S_ST}, {2*k}", f"    v_writelane_b32 v25, s{S_ST+2}, {2*k+1}"] if False else \
               [f"    s_memtime s[{S_ST}:{S_ST+1}]", f"    s_memrealtime s[{S_ST+2}:{S_ST+3}]", "    s_waitcnt lgkmcnt(0)",
                f"    v_writelane_b32 v1, s{S_ST}, {2*k}", f"    v_writelane_b32 v1, s{S_ST+2}, {2*k+1}"]
    en = render(E)
    if o.stamps:
        k = next(n for n, l in enumerate(en) if "v_pk_mul_f32" in l)
        en[k:k] = stamp(0)
    A += en
    for u in range(2):
        A += stamp(1 + 5*u)
        A += render(U[u]['first'])
        A.append(f"    s_mov_b32 s{S_TRIP}, 0")
        A.append(f"    s_mov_b32 s{S_KPAR}, s{S_WB}")
        A.append("    .p2align 6")
        A.append(f"L_LOOP{u}:")
        A += render(U[u]['body'][1]); A += render(U[u]['body'][2])
        A.append(f"    s_cmp_eq_u32 s{S_TRIP}, 3")
        A.append(f"    s_cbranch_scc1 L_DRAIN{u}")
        A += render(U[u]['body'][3]); A += render(U[u]['body'][0])
        A.append(f"    s_add_u32 s{S_TRIP}, s{S_TRIP}, 1")
        A.append(f"    s_xor_b32 s{S_KPAR}, s{S_KPAR}, 0x8000")
        A.append(f"    s_branch L_LOOP{u}")
        A.append(f"L_DRAIN{u}:")
        A += stamp(2 + 5*u)
        A += render(U[u]['drain'])
        A.append("    s_nop 7")
        A += stamp(3 + 5*u)
        if u == 0:
            A += render(US1)
            A.append("    s_nop 7")
            A += render(EP0)
            A += stamp(4)
            A.append(f"    s_mov_b32 s{S_QOFF}, 0")
            A += render(US2)
            A += stamp(5)
    A += render(EP1)
    A += stamp(9)
    if o.stamps:
        A.append("    s_waitcnt vmcnt(0)")
        A.append("    s_memrealtime s[92:93]")
        A.append("    s_waitcnt lgkmcnt(0)")
        A.append("    s_mov_b32 s96, s88\n    s_and_b32 s97, s89, 0xffff\n    s_mov_b32 s98, 268435456\n    s_mov_b32 s99, 0x20000")
        A.append("    v_mov_b32 v32, s90\n    v_mov_b32 v33, s92\n    s_lshl_b32 s46, s2, 3\n    v_mov_b32 v34, s46")
        A.append("    v_cmp_eq_u32 vcc, 0, v0\n    s_and_saveexec_b64 s[46:47], vcc")
        A.append("    buffer_store_dwordx2 v[32:33], v34, s[96:99], 0 offen")
        A.append("    s_mov_b64 exec, -1")
        A.append("    v_and_b32 v35, 63, v0")
        A.append(f"    s_lshl_b32 s46, s2, 2\n    s_add_u32 s46, s46, s{S_W}\n    s_mul_i32 s46, s46, {NST*8}\n    s_add_u32 s46, s46, 65536")
        A.append("    v_lshlrev_b32 v37, 2, v35\n    v_add_u32 v37, s46, v37")
        A.append(f"    v_cmp_gt_u32 vcc, {2*NST}, v35\n    s_and_saveexec_b64 s[46:47], vcc")
        A.append("    buffer_store_dword v1, v37, s[96:99], 0 offen\n    s_waitcnt vmcnt(0)")
    A.append("L_END:")
    A.append("    s_endpgm")
    A.append("L_CODE_END:")
    A.append(f""".section .rodata,"a"
.p2align 6
.amdhsa_kernel {o.name}
  .amdhsa_next_free_vgpr 512
  .amdhsa_next_free_sgpr 102
  .amdhsa_accum_offset 256
  .amdhsa_group_segment_fixed_size 0
  .amdhsa_kernarg_size 48
  .amdhsa_user_sgpr_count 2
  .amdhsa_user_sgpr_kernarg_segment_ptr 1
  .amdhsa_system_sgpr_workgroup_id_x 1
  .amdhsa_float_denorm_mode_32 3
.end_amdhsa_kernel
""")
    return "\n".join(A)

def main(argv):
    ap = argparse.ArgumentParser()
    ap.add_argument("-o", default="standalone__gqa_softmax__near_ridge.s")
    ap.add_argument("--set", action="append", default=[])
    a = ap.parse_args(argv)
    o = Opt()
    for kv in a.set:
        k, v = kv.split("=", 1)
        cur = getattr(o, k)
        if isinstance(cur, bool): v = v in ("1", "True", "true")
        elif isinstance(cur, int): v = int(v)
        else: v = v.replace("_", " ") if k.startswith("nt") else v
        setattr(o, k, v)
    txt = gen(o)
    open(a.o, "w").write(txt)
    print("waits:", {k[0] + ":" + str(k[1]): v for k, v in o.Nsite.items()}, file=sys.stderr)
if __name__ == "__main__": main(sys.argv[1:])
```
